```python
import torch

def _softmax(x, axis=-1):
    return torch.softmax(x, dim=axis)
def _gelu(x):
    return torch.nn.functional.gelu(x, approximate="tanh")
def _silu(x):
    return torch.nn.functional.silu(x)
def _sigmoid(x):
    return torch.sigmoid(x)
def _layernorm(x, axis=-1, eps=1e-5):
    m = x.mean(dim=axis, keepdim=True)
    v = x.var(dim=axis, keepdim=True, unbiased=False)
    return (x - m) / torch.sqrt(v + eps)
def _scatter_add(tgt, idx, src, axis=0):
    return tgt.clone().index_add_(axis, idx, src)
def _segment_sum(src, seg, n):
    out = torch.zeros((n,) + src.shape[1:], dtype=src.dtype)
    return out.index_add_(0, seg, src)
def _pad(x, pw):
    flat = tuple(v for pair in reversed(pw) for v in pair)
    return torch.nn.functional.pad(x, flat)

kernel_name = 'gated_mix__linear_attn_block__ssm_conv_s4d__prompt'

def setup_inputs():

    _w = (lambda a: (lambda t: t.to(torch.bfloat16) if t.is_floating_point() else t)(torch.as_tensor(a)))
    def _A_setup():
        B, S, D = 1, 2048, 512
        return {
            "x": _w((lambda *s: torch.randn(*s, dtype=torch.bfloat16) * 0.05)(B, S, D)),
            "wqkv": _w((lambda *s: torch.randn(*s, dtype=torch.bfloat16) * 0.8)(D, 3 * D)),
            "wo": _w((lambda *s: torch.randn(*s, dtype=torch.bfloat16) * 0.05)(D, D)),
        }
    _A_in = _A_setup()

    def _B_setup():
        Bsz, L, D, N = 1, 2048, 512, 128
        return {
            "u": _w((lambda *s: torch.randn(*s, dtype=torch.bfloat16) * 0.05)(Bsz, L, D)),
            "log_A_real": _w((lambda *s: torch.randn(*s, dtype=torch.bfloat16) * 6.4)(D, N) * 0.5),
            "A_imag": _w((lambda *s: torch.randn(*s, dtype=torch.bfloat16) * 0.05)(D, N) * 3.14),
            "C_real": _w((lambda *s: torch.randn(*s, dtype=torch.bfloat16) * 0.2)(D, N) / N ** 0.5),
            "C_imag": _w((lambda *s: torch.randn(*s, dtype=torch.bfloat16) * 0.2)(D, N) / N ** 0.5),
            "log_dt": _w((lambda *s: torch.randn(*s, dtype=torch.bfloat16) * 0.05)(D) * 0.5 - 4.0),
            "D_skip": _w((lambda *s: torch.randn(*s, dtype=torch.bfloat16) * 0.05)(D)),
        }
    _B_in = _B_setup()

    return {
        "A_x": _A_in["x"],
        "A_wqkv": _A_in["wqkv"],
        "A_wo": _A_in["wo"],
        "B_u": _B_in["u"],
        "B_log_A_real": _B_in["log_A_real"],
        "B_A_imag": _B_in["A_imag"],
        "B_C_real": _B_in["C_real"],
        "B_C_imag": _B_in["C_imag"],
        "B_log_dt": _B_in["log_dt"],
        "B_D_skip": _B_in["D_skip"],
        "gate_w": _w((lambda *s: torch.randn(*s, dtype=torch.bfloat16) * 0.05)(512) * 16.0),
    }

def reference(A_x, A_wqkv, A_wo, B_u, B_log_A_real, B_A_imag, B_C_real, B_C_imag, B_log_dt, B_D_skip, gate_w):
    def _A_ref(x, wqkv, wo):
        B, S, D = x.shape
        H = 32; Dh = D // H
        qkv = (lambda x, *d: x.permute(*d))((x @ wqkv).reshape(B, S, 3, H, Dh), 2, 0, 3, 1, 4)
        q, k, v = qkv[0], qkv[1], qkv[2]
        phi = lambda t: torch.where(t > 0, t + 1, torch.exp(t)) + 1e-6
        pq, pk = phi(q), phi(k)
        kv = torch.einsum("bhsd,bhse->bhde", pk, v)
        z = torch.einsum("bhsd->bhd", pk)
        num = torch.einsum("bhqd,bhde->bhqe", pq, kv)
        den = torch.einsum("bhqd,bhd->bhq", pq, z)[..., None] + 1e-6
        o = num / den
        return (lambda x, *d: x.permute(*d))(o, 0, 2, 1, 3).reshape(B, S, D) @ wo

    def _B_ref(u, log_A_real, A_imag, C_real, C_imag, log_dt, D_skip):
        L = u.shape[1]
        dt = torch.exp(log_dt)
        A = -torch.exp(log_A_real) + 1j * A_imag
        C = (C_real + 1j * C_imag) * dt[:, None]
        pos = (lambda x, dt: x.to(dt))(torch.arange(L), log_dt.dtype)
        P = torch.exp((A * dt[:, None])[:, :, None] * pos[None, None, :])
        K = 2.0 * torch.einsum("dn,dnl->dl", C, P).real
        L2 = 2 * L
        u_t = (lambda x, *d: x.permute(*d))(u, 0, 2, 1)
        Kf = (lambda x, *a, **k: torch.fft.rfft(x.float(), *a, **k))(K, L2)
        Uf = (lambda x, *a, **k: torch.fft.rfft(x.float(), *a, **k))(u_t, L2)
        y = (lambda x, *a, **k: torch.fft.irfft(x, *a, **k).to(torch.bfloat16))(Uf * Kf[None, :, :], L2)[:, :, :L]
        y = (lambda x, *d: x.permute(*d))(y, 0, 2, 1)
        return y + u * D_skip[None, None, :]

    x = A_x
    g = _sigmoid((x * gate_w).sum(-1, keepdims=True))
    a = _A_ref(x, A_wqkv, A_wo)
    b = _B_ref(x, B_log_A_real, B_A_imag, B_C_real, B_C_imag, B_log_dt, B_D_skip)
    return g * a + (1 - g) * b
```

```python
import re

TRANS = ("v_exp_f32", "v_log_f32", "v_rcp_f32", "v_rsq_f32", "v_sqrt_f32", "v_sin_f32", "v_cos_f32", "v_rcp_iflag_f32")
REG_RE = re.compile(r"\b([vsa])\[(\d+):(\d+)\]|\b([vsa])(\d+)\b|\b(vcc|exec|m0|scc)\b")


def regs_of(tok):
    out = set()
    for m in REG_RE.finditer(tok):
        if m.group(1):
            for i in range(int(m.group(2)), int(m.group(3)) + 1):
                out.add(m.group(1) + str(i))
        elif m.group(4):
            out.add(m.group(4) + m.group(5))
        else:
            out.add(m.group(6))
    return out


def split_ops(rest):
    ops, depth, cur = [], 0, ""
    for ch in rest:
        if ch == "[":
            depth += 1
        elif ch == "]":
            depth -= 1
        if ch == "," and depth == 0:
            ops.append(cur.strip())
            cur = ""
        else:
            cur += ch
    if cur.strip():
        ops.append(cur.strip())
    return ops


class Ins:
    __slots__ = ("text", "mn", "kind", "wr", "rd", "passes", "srcC", "srcAB", "dst", "data", "dpp", "states", "sgpr_rd_const")

    def __init__(self, text):
        self.text = text
        t = text.split(";")[0].strip()
        parts = t.split(None, 1)
        mn = parts[0]
        self.mn = mn
        rest = parts[1] if len(parts) > 1 else ""
        ops = split_ops(rest)
        self.wr, self.rd = set(), set()
        self.passes = 0
        self.srcC = set(); self.srcAB = set(); self.dst = set(); self.data = set()
        self.dpp = ("dpp" in mn) or ("row_shr" in rest) or ("row_bcast" in rest) or ("quad_perm" in rest) or ("row_shl" in rest) or ("row_ror" in rest) or ("wave_" in rest)
        self.states = 1
        def R(i):
            o = ops[i]
            o = re.split(r"\s+(?=[a-z_]+\d*:|offen|idxen|lds|sc0|sc1|nt\b|clamp|off\b|glc)", o)[0]
            return regs_of(o)
        if mn.startswith("v_mfma"):
            self.kind = "mfma"
            self.passes = 8 if "32x32" in mn else 4
            self.dst = R(0); self.wr = set(self.dst)
            self.srcAB = R(1) | R(2)
            self.srcC = R(3)
            self.rd = self.srcAB | self.srcC
        elif mn.startswith("v_"):
            self.kind = "valu"
            if mn.startswith("v_cmp"):
                self.wr = R(0)
                for i in range(1, len(ops)): self.rd |= R(i)
            elif mn.startswith("v_permlane") and "swap" in mn:
                self.wr = R(0) | R(1); self.rd = R(0) | R(1)
            elif mn.startswith(("v_add_co", "v_sub_co", "v_addc_co", "v_subb_co")):
                self.wr = R(0) | R(1)
                for i in range(2, len(ops)): self.rd |= R(i)
            elif mn == "v_nop":
                pass
            else:
                self.wr = R(0)
                for i in range(1, len(ops)): self.rd |= R(i)
                if mn.startswith(("v_fmac", "v_dot2c", "v_writelane", "v_pk_fmac")) or self.dpp:
                    self.rd |= R(0)
                if mn.startswith("v_cndmask") and len(ops) == 3:
                    self.rd.add("vcc")
        elif mn.startswith("ds_"):
            self.kind = "ds"
            if mn.startswith(("ds_read", "ds_bpermute", "ds_permute", "ds_swizzle")):
                self.wr = R(0)
                for i in range(1, len(ops)): self.rd |= R(i)
            else:
                for i in range(len(ops)): self.rd |= R(i)
            if "addtid" in mn: self.rd.add("m0")
        elif mn.startswith(("buffer_", "global_", "flat_")):
            self.kind = "vmem"
            is_lds = bool(re.search(r"\blds\b", rest)) or "_lds_" in mn
            if is_lds:
                for i in range(len(ops)): self.rd |= R(i)
                self.rd.add("m0")
            elif "load" in mn:
                self.wr = R(0)
                for i in range(1, len(ops)): self.rd |= R(i)
            else:
                for i in range(len(ops)): self.rd |= R(i)
                if mn.startswith("buffer_store") : self.data = R(0)
                elif mn.startswith("global_store"): self.data = R(1)
                if not ("x3" in mn or "x4" in mn): self.data = set()
                if "atomic" in mn and re.search(r"\bsc0\b", rest):
                    self.wr = R(0)
        elif mn.startswith("s_"):
            self.kind = "salu"
            if mn == "s_nop":
                self.states = int(ops[0], 0) + 1
            elif mn.startswith(("s_cmp", "s_cbranch", "s_branch", "s_waitcnt", "s_barrier", "s_endpgm", "s_setprio", "s_sleep", "s_bitcmp")):
                for i in range(len(ops)): self.rd |= regs_of(ops[i]) if not mn.startswith(("s_waitcnt", "s_cbranch", "s_branch")) else set()
            else:
                if ops:
                    self.wr = R(0)
                for i in range(1, len(ops)): self.rd |= R(i)
                if "saveexec" in mn: self.wr.add("exec")
        else:
            self.kind = "other"


def need(p, c):
    n = 0
    pv = {r for r in p.wr if r[0] in "va" and r not in ("vcc",)}
    ps = {r for r in p.wr if r[0] == "s" or r == "vcc"}
    if p.kind == "valu":
        isdot = p.mn.startswith("v_dot")
        if c.kind == "mfma" and pv & c.rd: n = max(n, 3 if isdot else 2)
        if c.kind == "valu":
            if p.mn.startswith(TRANS) and not c.mn.startswith(TRANS) and pv & (c.rd | c.wr): n = max(n, 1)
            if p.mn.startswith(TRANS) and c.mn.startswith(TRANS) and pv & c.rd: n = max(n, 1)
            if ps & c.rd:
                n = max(n, 4 if c.mn.startswith(("v_readlane", "v_writelane")) else 2)
            if c.mn.startswith(("v_readfirstlane", "v_readlane")) and pv & c.rd: n = max(n, 1)
            if (c.dpp or c.mn.startswith("v_permlane")) and pv & c.rd: n = max(n, 2)
            if isdot and pv & (c.rd | c.wr) and c.mn != p.mn: n = max(n, 3)
            if isdot and c.mn == p.mn and pv & c.rd: n = max(n, 0)
            if "op_sel" in p.text and not p.mn.startswith("v_pk") and not isdot and pv & (c.rd | c.wr): n = max(n, 1)
        if isdot and c.kind in ("vmem", "ds") and pv & c.rd: n = max(n, 3)
        if c.kind == "vmem" and ps & c.rd: n = max(n, 5)
        if c.kind == "salu" and ps & c.rd: n = max(n, 1)
    if p.kind == "mfma":
        big = 12 if p.passes == 8 else 8
        if c.kind == "mfma":
            if p.dst & c.srcAB: n = max(n, big)
            if p.dst & c.srcC:
                if not (p.dst == c.srcC and p.passes == c.passes): n = max(n, p.passes + 2)
            elif p.dst & c.dst: n = max(n, big)
        elif c.kind in ("valu", "vmem", "ds"):
            if p.dst & (c.rd | c.wr): n = max(n, big)
        if c.kind == "valu" and p.srcC & c.wr: n = max(n, p.passes - 1)
    if p.kind == "vmem" and p.data:
        if p.data & c.wr: n = max(n, 2 if c.kind == "valu" else 1)
    if p.kind == "salu" and "m0" in p.wr and "m0" in c.rd and c.kind in ("vmem", "ds"): n = max(n, 1)
    return n


class Asm:
    def __init__(self):
        self.items = []

    def __call__(self, text):
        for line in text.strip("\n").split("\n"):
            s = line.strip()
            if not s:
                continue
            if s.startswith((";", ".")) or s.endswith(":"):
                self.items.append(s)
            else:
                self.items.append(Ins(s))

    def raw(self, s):
        self.items.append(s)

    def finalize(self):
        out = []
        window = []
        nops = 0
        for it in self.items:
            if isinstance(it, str):
                out.append(it)
                continue
            req = 0
            dist = 0
            for p in reversed(window):
                r = need(p, it) - dist
                if r > req: req = r
                dist += p.states
                if dist >= 20: break
            if req > 0:
                k = req
                while k > 0:
                    m = min(k, 16)
                    nop = Ins(f"s_nop {m-1}")
                    out.append("    " + nop.text + "   ; auto")
                    window.append(nop)
                    nops += m
                    k -= m
            out.append("    " + it.text)
            window.append(it)
            if len(window) > 24: window = window[-24:]
        self.auto_nop_states = nops
        return "\n".join(out) + "\n"
```

```python
import sys, struct
from asmlib import Asm

def f32(x):
    return "0x%08x" % struct.unpack("<I", struct.pack("<f", x))[0]

NAME = "gated_mix__linear_attn_block__ssm_conv_s4d__prompt"
K1 = NAME + "_kernel"
K2 = "gmix_out_kernel"

WS_PQ = 0
WS_BG = 2 << 20
WS_KV = 4 << 20
WS_G = (4 << 20) + 65536
KV_HEAD = 1088

LOG2E = 1.4426950408889634
L2E_HI = struct.unpack("<f", struct.pack("<I", 0x3FB8AA00))[0]
L2E_LO = LOG2E - L2E_HI

def vr(b, n):
    return f"v[{b}:{b+n-1}]" if n > 1 else f"v{b}"
def sr(b, n):
    return f"s[{b}:{b+n-1}]" if n > 1 else f"s{b}"

def srd(a, d, base, nbytes):
    a(f"""
    s_mov_b32 s{d}, s{base}
    s_and_b32 s{d+1}, s{base+1}, 0xffff
    s_mov_b32 s{d+2}, {nbytes}
    s_mov_b32 s{d+3}, 0x00020000
    """)

def gen_k1(a):
    a(f"""
    .globl {K1}
    .p2align 8
    .type {K1},@function
    {K1}:
    s_cmp_ge_u32 s2, 256
    s_cbranch_scc1 L1_end
    s_load_dwordx4 s[4:7], s[0:1], 0
    s_load_dwordx16 s[16:31], s[0:1], 32
    s_load_dwordx4 s[32:35], s[0:1], 96
    v_lshrrev_b32 v2, 6, v0
    v_and_b32 v1, 63, v0
    v_readfirstlane_b32 s44, v2
    s_and_b32 s45, s2, 7
    s_lshr_b32 s46, s2, 4
    s_bitcmp1_b32 s2, 3
    s_cbranch_scc1 L1_ssm
    """)
    gen_gemm(a)
    a("L1_ssm:")
    a("s_nop 4")
    gen_ssm(a)
    a("""
    L1_end:
    s_endpgm
    """)

XSLOT = 16384
WBASE = 65536
WSLOT = 24576

def gen_gemm(a):
    a("""
    s_lshr_b32 s47, s45, 1
    s_lshl_b32 s47, s47, 2
    s_lshr_b32 s3, s46, 2
    s_add_u32 s47, s47, s3
    s_and_b32 s48, s45, 1
    s_lshl_b32 s48, s48, 2
    s_and_b32 s8, s46, 3
    s_add_u32 s48, s48, s8
    s_add_u32 s49, s3, s8
    s_lshl_b32 s49, s49, 1
    s_and_b32 s49, s49, 7
    s_and_b32 s9, s44, 1
    s_lshl_b32 s10, s9, 2
    v_lshrrev_b32 v10, 4, v1
    v_add_u32 v10, s10, v10
    v_and_b32 v10, 7, v10
    v_and_b32 v11, 7, v1
    v_xor_b32 v10, v10, v11
    v_lshlrev_b32 v10, 4, v10
    v_lshrrev_b32 v12, 3, v1
    v_lshl_add_u32 v2, v12, 10, v10
    v_lshrrev_b32 v10, 2, v1
    v_and_b32 v10, 4, v10
    v_xor_b32 v10, v10, v11
    v_lshlrev_b32 v10, 4, v10
    v_mul_u32_u24 v3, 3072, v12
    v_add_u32 v3, v3, v10
    s_lshl_b32 s50, s47, 17           ; ti*128*1024
    s_lshl_b32 s10, s44, 13           ; w*8*1024
    s_add_u32 s50, s50, s10
    s_mul_i32 s51, s44, 24576         ; w*8*3072
    s_lshl_b32 s10, s48, 7
    s_add_u32 s51, s51, s10
    s_lshl_b32 s52, s44, 10
    s_waitcnt lgkmcnt(0)
    """)
    srd(a, 36, 4, 2 << 20)
    srd(a, 40, 6, 512 * 1536 * 2)

    def dma(it):
        slot = it % 4
        a(f"""
        s_add_u32 s53, s49, {it}
        s_and_b32 s53, s53, 7
        s_lshl_b32 s54, s53, 7
        s_add_u32 s54, s54, s50
        s_add_u32 m0, s52, {slot*XSLOT}
        s_mul_i32 s55, s53, {64*3072}
        buffer_load_dwordx4 v2, s[36:39], s54 offen lds
        s_add_u32 m0, s52, {slot*XSLOT + 8192}
        s_add_u32 s54, s54, 65536
        buffer_load_dwordx4 v2, s[36:39], s54 offen lds
        s_add_u32 m0, s52, {WBASE + slot*WSLOT}
        s_add_u32 s55, s55, s51
        buffer_load_dwordx4 v3, s[40:43], s55 offen lds
        s_add_u32 m0, s52, {WBASE + slot*WSLOT + 8192}
        s_add_u32 s55, s55, 1024
        buffer_load_dwordx4 v3, s[40:43], s55 offen lds
        s_add_u32 m0, s52, {WBASE + slot*WSLOT + 16384}
        s_add_u32 s55, s55, 1024
        buffer_load_dwordx4 v3, s[40:43], s55 offen lds
        """)

    def frag_addrs():
        a("""
        v_and_b32 v10, 31, v1
        v_lshrrev_b32 v11, 5, v1
        v_bfe_u32 v12, v1, 1, 3
        v_xor_b32 v12, v12, v11
        s_and_b32 s9, s44, 1
        s_lshl_b32 s9, s9, 13
        v_lshlrev_b32 v10, 7, v10
        v_add_u32 v10, s9, v10
        """)
        for ks in range(4):
            a(f"""
            v_xor_b32 v13, {2*ks}, v12
            v_lshl_add_u32 v{4+ks}, v13, 4, v10
            """)
        a(f"""
        s_lshr_b32 s9, s44, 1
        s_and_b32 s9, s9, 1              ; hp
        v_bfe_u32 v10, v1, 2, 2          ; r
        v_lshl_add_u32 v12, v11, 3, v10  ; 8g + r
        v_lshlrev_b32 v12, 7, v12
        v_lshrrev_b32 v10, 1, v10
        v_xor_b32 v10, s9, v10
        v_lshl_add_u32 v12, v10, 6, v12
        v_bfe_u32 v10, v1, 4, 1
        v_lshl_add_u32 v12, v10, 5, v12
        v_and_b32 v10, 3, v1
        v_lshl_add_u32 v12, v10, 3, v12
        v_add_u32 v8, {WBASE}, v12
        v_add_u32 v9, {WBASE + 2*WSLOT}, v12
        """)

    def mainloop(role):
        def reads(it, ks):
            slot = it % 4
            fs = 20 + 16 * (ks & 1)
            wreg = 8 + (slot >> 1)
            woff = (slot & 1) * WSLOT + ks * 2048
            a(f"ds_read_b128 {vr(fs,4)}, v{4+ks} offset:{slot*XSLOT}")
            grps = (1, 2) if role == "kv" else (0,)
            g0 = grps[0]
            a(f"ds_read_b64_tr_b16 {vr(fs+8,2)}, v{wreg} offset:{woff + g0*8192}")
            a(f"ds_read_b64_tr_b16 {vr(fs+10,2)}, v{wreg} offset:{woff + g0*8192 + 512}")
            a(f"ds_read_b128 {vr(fs+4,4)}, v{4+ks} offset:{slot*XSLOT + 4096}")
            if role == "kv":
                a(f"ds_read_b64_tr_b16 {vr(fs+12,2)}, v{wreg} offset:{woff + 2*8192}")
                a(f"ds_read_b64_tr_b16 {vr(fs+14,2)}, v{wreg} offset:{woff + 2*8192 + 512}")
        nrd = 6 if role == "kv" else 4
        def mfmas(it, ks):
            fs = 20 + 16 * (ks & 1)
            first = (it == 0 and ks == 0)
            def C(b): return "0" if first else vr(b, 16)
            if role == "kv":
                for (acc, xa, wb) in ((64, fs, fs+8), (96, fs+4, fs+8), (80, fs, fs+12), (112, fs+4, fs+12)):
                    a(f"v_mfma_f32_32x32x16_bf16 {vr(acc,16)}, {vr(xa,4)}, {vr(wb,4)}, {C(acc)}")
            else:
                for (acc, xa, wb) in ((64, fs, fs+8), (80, fs+4, fs+8)):
                    a(f"v_mfma_f32_32x32x16_bf16 {vr(acc,16)}, {vr(wb,4)}, {vr(xa,4)}, {C(acc)}")
        a("s_waitcnt vmcnt(15)")
        a("s_barrier")
        reads(0, 0)
        for it in range(8):
            for ks in range(3):
                reads(it, ks + 1)
                a(f"s_waitcnt lgkmcnt({nrd})")
                mfmas(it, ks)
            if it < 7:
                n = 5 * (min(it + 3, 7) - (it + 1))
                a(f"s_waitcnt vmcnt({n}) lgkmcnt(0)")
                a("s_barrier")
                reads(it + 1, 0)
                if it + 4 <= 7:
                    dma(it + 4)
            else:
                a("s_waitcnt lgkmcnt(0)")
            mfmas(it, 3)

    def phi_pack(src, dst, tmp):
        for p in range(8):
            r = src + 2 * p
            t = tmp + 2 * (p % 4)
            a(f"""
            v_pk_mul_f32 {vr(t,2)}, {vr(r,2)}, s[56:57]
            v_max_f32 v{r}, 0, v{r}
            v_max_f32 v{r+1}, 0, v{r+1}
            v_exp_f32_e64 v{t}, v{t} clamp
            v_exp_f32_e64 v{t+1}, v{t+1} clamp
            v_pk_add_f32 {vr(r,2)}, {vr(r,2)}, s[58:59]
            v_pk_add_f32 {vr(r,2)}, {vr(r,2)}, {vr(t,2)}
            v_cvt_pk_bf16_f32 v{dst+p}, v{r}, v{r+1}
            """)

    a(f"""
    s_mov_b32 s56, {f32(LOG2E)}
    s_mov_b32 s57, {f32(LOG2E)}
    s_mov_b32 s58, {f32(1e-6)}
    s_mov_b32 s59, {f32(1e-6)}
    s_cmp_ge_u32 s44, 4
    s_cbranch_scc1 L1_gq
    """)
    for it in range(4):
        dma(it)
    frag_addrs()
    mainloop("kv")
    a(f"""
    s_lshl_b32 s9, s48, 2
    v_mov_b32 v10, s9
    global_load_dword v11, v10, s[32:33] sc1
    """)
    phi_pack(64, 128, 20)
    phi_pack(96, 136, 20)
    for p in range(8):
        a(f"v_cvt_pk_bf16_f32 v{144+p}, v{80+2*p}, v{81+2*p}")
    for p in range(8):
        a(f"v_cvt_pk_bf16_f32 v{152+p}, v{112+2*p}, v{113+2*p}")
    for j in range(4):
        c = "0" if j == 0 else vr(64, 16)
        a(f"v_mfma_f32_32x32x16_bf16 {vr(64,16)}, {vr(144+4*j,4)}, {vr(128+4*j,4)}, {c}")
    a("s_mov_b32 s9, 0x3f803f80")
    a("v_mov_b32 v12, 0")
    a("v_mov_b32 v13, 0")
    for p in range(8):
        a(f"v_dot2_f32_bf16 v12, v{128+2*p}, s9, v12")
        a(f"v_dot2_f32_bf16 v13, v{129+2*p}, s9, v13")
    a(f"""
    s_lshr_b32 s9, s44, 1
    s_lshl_b32 s9, s9, 1
    s_lshl_b32 s10, s48, 2
    s_add_u32 s9, s9, s10
    s_mul_i32 s9, s9, {KV_HEAD}
    s_add_u32 s9, s9, {WS_KV}
    v_bfe_u32 v14, v1, 4, 1
    v_mul_u32_u24 v14, {KV_HEAD}, v14
    v_add_u32 v14, s9, v14
    v_bfe_u32 v15, v1, 2, 1
    v_lshl_add_u32 v14, v15, 5, v14
    v_bfe_u32 v15, v1, 3, 1
    v_lshl_add_u32 v14, v15, 4, v14
    v_and_b32 v15, 3, v1
    v_lshl_add_u32 v14, v15, 2, v14
    v_lshrrev_b32 v15, 5, v1
    v_lshl_add_u32 v15, v15, 6, v14       ; + g*64
    v_add_f32 v12, v12, v13
    v_and_b32 v16, 16, v1
    v_cmp_eq_u32 vcc, 0, v16
    """)
    for r in range(8):
        a(f"v_cndmask_b32 v{20+r}, v{72+r}, v{64+r}, vcc")
    a(f"""
    s_mov_b32 s10, 0
    L1_poll:
    s_waitcnt vmcnt(0)
    v_readfirstlane_b32 s9, v11
    s_cmp_lg_u32 s9, 0
    s_cbranch_scc1 L1_go
    s_add_u32 s10, s10, 1
    s_cmp_gt_u32 s10, 0x40000
    s_cbranch_scc1 L1_go
    s_sleep 1
    global_load_dword v11, v10, s[32:33] sc1
    s_branch L1_poll
    L1_go:
    """)
    for r in range(8):
        off = (8 * (r >> 2) + 2 * (r & 3)) * 64
        a(f"global_atomic_add_f32 v15, v{20+r}, s[34:35] offset:{off} sc1")
    a(f"global_atomic_add_f32 v14, v12, s[34:35] offset:1024 sc1")
    a("s_endpgm")

    a("L1_gq:")
    a("s_nop 4")
    a(f"""
    s_lshl_b32 s9, s47, 3
    s_add_u32 s9, s9, s44
    s_cmp_lg_u32 s9, 4
    s_cbranch_scc1 L1_nozero
    s_mul_i32 s9, s48, {4*KV_HEAD}
    s_add_u32 s9, s9, {WS_KV}
    v_lshlrev_b32 v10, 4, v1
    v_add_u32 v10, s9, v10
    v_mov_b32 v12, 0
    v_mov_b32 v13, 0
    v_mov_b32 v14, 0
    v_mov_b32 v15, 0
    global_store_dwordx4 v10, v[12:15], s[34:35] sc0 sc1
    global_store_dwordx4 v10, v[12:15], s[34:35] offset:1024 sc0 sc1
    global_store_dwordx4 v10, v[12:15], s[34:35] offset:2048 sc0 sc1
    global_store_dwordx4 v10, v[12:15], s[34:35] offset:3072 sc0 sc1
    global_store_dwordx4 v10, v[12:15], s[34:35] offset:{4*KV_HEAD-1024} sc0 sc1
    L1_nozero:
    """)
    a(f"""
    s_lshl_b32 s9, s47, 7
    s_lshl_b32 s10, s48, 4
    s_add_u32 s9, s9, s10
    s_sub_u32 s10, s44, 4
    s_lshl_b32 s10, s10, 2
    s_add_u32 s60, s9, s10
    s_lshl_b32 s9, s60, 10
    v_lshlrev_b32 v16, 4, v1
    v_add_u32 v17, s9, v16
    global_load_dwordx4 v[112:115], v16, s[28:29]
    global_load_dwordx4 v[96:99], v17, s[4:5]
    global_load_dwordx4 v[100:103], v17, s[4:5] offset:1024
    global_load_dwordx4 v[104:107], v17, s[4:5] offset:2048
    global_load_dwordx4 v[108:111], v17, s[4:5] offset:3072
    """)
    for it in range(4):
        dma(it)
    frag_addrs()
    a("s_waitcnt vmcnt(20)")
    a(f"""
    s_lshl_b32 s9, s47, 3
    s_add_u32 s9, s9, s44
    s_cmp_lg_u32 s9, 4
    s_cbranch_scc1 L1_noflag
    s_lshl_b32 s9, s48, 2
    v_mov_b32 v10, s9
    v_mov_b32 v11, 1
    s_mov_b64 exec, 1
    global_store_dword v10, v11, s[32:33] sc0 sc1
    s_mov_b64 exec, -1
    L1_noflag:
    """)
    for t in range(4):
        a(f"v_mov_b32 v{116+t}, 0")
    for j in range(4):
        for t in range(4):
            a(f"v_dot2_f32_bf16 v{116+t}, v{96+4*t+j}, v{112+j}, v{116+t}")
    for mod in ("row_shr:1", "row_shr:2", "row_shr:4", "row_shr:8"):
        for t in range(4):
            a(f"v_add_f32_dpp v{116+t}, v{116+t}, v{116+t} {mod} row_mask:0xf bank_mask:0xf bound_ctrl:0")
    for mod in ("row_bcast:15 row_mask:0xa", "row_bcast:31 row_mask:0xc"):
        for t in range(4):
            a(f"v_add_f32_dpp v{116+t}, v{116+t}, v{116+t} {mod} bank_mask:0xf")
    for t in range(4):
        a(f"v_mul_f32 v{116+t}, {f32(-LOG2E)}, v{116+t}")
    for t in range(4):
        a(f"v_exp_f32 v{116+t}, v{116+t}")
    for t in range(4):
        a(f"v_add_f32 v{116+t}, 1.0, v{116+t}")
    for t in range(4):
        a(f"v_rcp_f32 v{116+t}, v{116+t}")
    mainloop("q")
    phi_pack(64, 128, 20)
    phi_pack(80, 136, 20)
    a(f"""
    s_lshl_b32 s9, s47, 2
    s_and_b32 s10, s44, 1
    s_lshl_b32 s10, s10, 1
    s_add_u32 s9, s9, s10
    s_lshl_b32 s9, s9, 5
    s_lshl_b32 s10, s48, 2
    s_add_u32 s9, s9, s10
    s_and_b32 s10, s44, 2
    s_add_u32 s9, s9, s10
    s_lshl_b32 s9, s9, 10
    v_add_u32 v10, s9, v16
    v_add_u32 v11, 0x8000, v10
    global_store_dwordx4 v10, v[128:131], s[34:35]
    global_store_dwordx4 v10, v[132:135], s[34:35] offset:1024
    global_store_dwordx4 v11, v[136:139], s[34:35]
    global_store_dwordx4 v11, v[140:143], s[34:35] offset:1024
    s_lshl_b32 s9, s60, 2
    s_add_u32 s9, s9, {WS_G}
    v_mov_b32 v12, s9
    s_mov_b32 exec_lo, 0
    s_mov_b32 exec_hi, 0x80000000
    global_store_dwordx4 v12, v[116:119], s[34:35]
    s_endpgm
    """)

UVP = 272
UVW = 58 * UVP
CHR = 2 * UVW
KCP = 172 * 16
S_OFF = 8 * KCP
S_LEN = 2112
EX0 = 8192
EX1 = CHR - 2048
XP0 = 4 * CHR
XPC = 5120
XPP = 1280
YP = 9216
LDS1 = 163840
assert XP0 + 4 * XPC <= LDS1
assert XP0 % 16 == 0 and CHR % 16 == 0

def gen_ssm(a):
    a(f"""
    s_lshl_b32 s47, s45, 4
    s_add_u32 s47, s47, s46           ; cg
    s_and_b32 s48, s44, 3
    s_lshr_b32 s49, s44, 2
    s_mul_i32 s50, s48, {CHR}
    s_mul_i32 s51, s49, {UVW}
    s_add_u32 s51, s51, s50
    s_lshl_b32 s9, s47, 2
    s_add_u32 s9, s9, s48
    s_lshl_b32 s9, s9, 8
    s_lshl_b32 s10, s49, 7
    s_add_u32 s9, s9, s10
    v_lshlrev_b32 v2, 1, v1
    v_add_u32 v2, s9, v2
    s_lshl_b32 s11, s47, 3
    s_waitcnt lgkmcnt(0)
    global_load_ushort v4, v2, s[16:17]
    global_load_ushort v5, v2, s[18:19]
    global_load_ushort v6, v2, s[20:21]
    global_load_ushort v7, v2, s[22:23]
    s_load_dwordx2 s[52:53], s[24:25], s11
    s_load_dwordx2 s[54:55], s[26:27], s11
    s_lshr_b32 s9, s46, 1
    s_add_u32 s9, s9, s44
    s_and_b32 s9, s9, 7               ; bhi
    v_bfe_u32 v10, v1, 1, 3
    s_lshl_b32 s10, s9, 3
    v_add_u32 v10, s10, v10           ; beta
    v_lshrrev_b32 v11, 4, v1          ; G
    v_and_b32 v12, 1, v1              ; half
    v_lshlrev_b32 v13, 3, v10
    v_lshl_add_u32 v13, v11, 1, v13
    v_add_u32 v13, v13, v12           ; q
    v_lshlrev_b32 v13, 12, v13        ; row 4q * 1024
    v_add_u32 v13, s11, v13
    global_load_dwordx2 v[240:241], v13, s[4:5]
    global_load_dwordx2 v[242:243], v13, s[4:5] offset:1024
    global_load_dwordx2 v[244:245], v13, s[4:5] offset:2048
    global_load_dwordx2 v[246:247], v13, s[4:5] offset:3072
    v_mul_u32_u24 v14, {XPP}, v11
    v_lshl_add_u32 v14, v10, 4, v14
    v_lshl_add_u32 v14, v12, 3, v14
    v_add_u32 v248, {XP0 + 256}, v14
    v_lshrrev_b32 v14, 4, v0
    v_mul_u32_u24 v14, {XPP}, v14
    v_and_b32 v15, 15, v0
    v_lshl_add_u32 v14, v15, 4, v14
    v_add_u32 v14, {XP0}, v14
    v_mov_b32 v16, 0
    v_mov_b32 v17, 0
    v_mov_b32 v18, 0
    v_mov_b32 v19, 0
    s_cmp_lg_u32 s49, 0
    s_cbranch_scc1 L1_s_nz
    ds_write_b128 v14, v[16:19]
    L1_s_nz:
    v_lshlrev_b32 v3, 2, v1
    v_add_u32 v3, s51, v3
    s_waitcnt lgkmcnt(0)
    s_cmp_ge_u32 s48, 2
    s_cselect_b32 s9, s53, s52
    s_lshl_b32 s10, s9, 16
    s_and_b32 s9, s9, 0xffff0000
    s_bitcmp1_b32 s48, 0
    s_cselect_b32 s9, s9, s10
    s_mov_b32 s56, {f32(L2E_HI)}
    s_mov_b32 s57, {f32(L2E_LO)}
    v_mov_b32 v8, s9
    """)
    def exp_bf16(x, t0, t1):
        a(f"""
        v_mul_f32 v{t0}, s56, v{x}
        v_rndne_f32 v{t1}, v{t0}
        v_sub_f32 v{t0}, v{t0}, v{t1}
        v_fma_f32 v{t0}, v{x}, s57, v{t0}
        v_exp_f32 v{t0}, v{t0}
        v_cvt_i32_f32 v{t1}, v{t1}
        v_ldexp_f32 v{t0}, v{t0}, v{t1}
        v_cvt_pk_bf16_f32 v{t0}, v{t0}, v{t0}
        v_lshlrev_b32 v{x}, 16, v{t0}
        """)
    exp_bf16(8, 10, 11)
    a("s_waitcnt vmcnt(4)")
    a("""
    v_lshlrev_b32 v4, 16, v4
    v_lshlrev_b32 v5, 16, v5
    v_lshlrev_b32 v6, 16, v6
    v_lshlrev_b32 v7, 16, v7
    """)
    exp_bf16(4, 10, 11)
    a(f"""
    v_mul_f32 v4, v4, v8
    v_mul_f32 v4, {f32(-LOG2E)}, v4       ; arl
    v_mul_f32 v5, v5, v8
    v_mul_f32 v5, 0.15915494, v5
    v_add_f32 v9, v8, v8
    v_mul_f32 v30, v6, v9
    v_mul_f32_e64 v31, v7, -v9
    """)
    pw = [(1, 20), (8, 22), (256, 24), (512, 26), (1024, 28)]
    for i, (p, d) in enumerate(pw):
        t = 10 + 2 * i
        if p == 1:
            a(f"v_exp_f32 v{t}, v4")
            a(f"v_fract_f32 v{t+1}, v5")
        else:
            a(f"v_mul_f32 v{t}, {f32(float(p))}, v4")
            a(f"v_mul_f32 v{t+1}, {f32(float(p))}, v5")
            a(f"v_exp_f32 v{t}, v{t}")
            a(f"v_fract_f32 v{t+1}, v{t+1}")
    for i, (p, d) in enumerate(pw):
        t = 10 + 2 * i
        a(f"v_cos_f32 v{d}, v{t+1}")
        a(f"v_sin_f32 v{d+1}, v{t+1}")
    for i, (p, d) in enumerate(pw):
        t = 10 + 2 * i
        a(f"v_mul_f32 v{d}, v{d}, v{t}")
        a(f"v_mul_f32 v{d+1}, v{d+1}, v{t}")

    def cm1(d, x, y):
        return f"v_pk_mul_f32 {vr(d,2)}, {vr(x,2)}, {vr(y,2)} op_sel:[0,0] op_sel_hi:[1,0]"
    def cm2(d, x, y, conj):
        neg = "neg_hi:[1,0,0]" if conj else "neg_lo:[1,0,0]"
        return f"v_pk_fma_f32 {vr(d,2)}, {vr(x,2)}, {vr(y,2)}, {vr(d,2)} op_sel:[1,1,0] op_sel_hi:[0,1,1] {neg}"
    pk = [0]
    def put(src, rows):
        t = 10 + (pk[0] % 8); pk[0] += 1
        a(f"v_cvt_pk_bf16_f32 v{t}, v{src}, v{src+1}")
        for r in rows:
            a(f"ds_write_b32 v3, v{t} offset:{r*UVP}")
    def batch(items):
        for (d, x, y, cj, rows) in items: a(cm1(d, x, y))
        for (d, x, y, cj, rows) in items: a(cm2(d, x, y, cj))
        for (d, x, y, cj, rows) in items:
            if rows: put(d, rows)
    V = lambda b: 64 + 2 * b
    U = lambda c: 30 + 2 * c
    urow = {0: [32+0], 1: [32+1], 2: [32+2], 3: [32+3], 4: [32+8], 5: [32+9], 6: [32+10], 7: [32+11], 8: [],
            256: [32+4, 32+5], 258: [32+6], 260: [32+7, 32+12, 32+13], 262: [32+14], 264: [32+15],
            512: [32+16], 516: [32+17], 520: [32+18], 1032: [32+19],
            768: [32+20], 772: [32+21], 776: [32+22], 1544: [32+23], 1288: [32+24], 1800: [32+25]}
    a("v_mov_b32 v10, 0x3f80")
    a("ds_write_b32 v3, v10")
    pk[0] = 1
    a(f"v_mov_b32 v{V(1)}, v22")
    a(f"v_mov_b32 v{V(1)+1}, v23")
    put(22, [1])
    put(30, urow[0])
    H = {}
    nxt = [128]
    def home(e):
        H[e] = nxt[0]; nxt[0] += 2; return H[e]
    batch([(V(2), V(1), V(1), False, [2]), (U(1), U(0), 20, True, urow[1]), (home(256), U(0), 24, True, urow[256]), (home(512), U(0), 26, True, urow[512])])
    batch([(V(3), V(2), V(1), False, [3]), (V(4), V(2), V(2), False, [4]), (U(2), U(1), 20, True, urow[2]), (home(768), H[256], 26, True, urow[768])])
    extra = {
        0: [(U(3), U(2), 20, True, urow[3]), (lambda: (home(258), U(2), 24, True, urow[258]))],
        1: [(U(4), U(3), 20, True, urow[4])],
        2: [(U(5), U(4), 20, True, urow[5]), (lambda: (home(260), U(4), 24, True, urow[260])), (lambda: (home(516), U(4), 26, True, urow[516]))],
        3: [(U(6), U(5), 20, True, urow[6]), (lambda: (home(772), H[260], 26, True, urow[772]))],
        4: [(U(7), U(6), 20, True, urow[7]), (lambda: (home(262), U(6), 24, True, urow[262]))],
        5: [(U(8), U(7), 20, True, urow[8])],
        6: [(lambda: (home(264), U(8), 24, True, urow[264])), (lambda: (home(520), U(8), 26, True, urow[520])), (lambda: (home(1032), U(8), 28, True, urow[1032]))],
    }
    for step in range(7):
        items = []
        for j in range(4):
            b = 5 + 4 * step + j
            if b <= 31:
                items.append((V(b), V(b - 4), V(4), False, [b]))
        for e in extra[step]:
            items.append(e() if callable(e) else e)
        batch(items)
    batch([(home(776), H[264], 26, True, urow[776]), (home(1288), H[264], 28, True, urow[1288]), (home(1544), H[520], 28, True, urow[1544])])
    batch([(home(1800), H[776], 28, True, urow[1800])])

    a(f"""
    v_and_b32 v10, 31, v1
    v_min_u32 v11, 25, v10
    v_mul_u32_u24 v10, {UVP}, v10
    v_mul_u32_u24 v11, {UVP}, v11
    v_lshrrev_b32 v12, 5, v1
    v_lshlrev_b32 v12, 4, v12
    v_add_u32 v12, s51, v12
    v_add_u32 v4, v10, v12
    v_add_u32 v5, v11, v12
    s_waitcnt lgkmcnt(0)
    """)
    for ks in range(8):
        a(f"ds_read_b128 {vr(64+8*ks,4)}, v5 offset:{32*UVP + 32*ks}")
        a(f"ds_read_b128 {vr(68+8*ks,4)}, v4 offset:{32*ks}")
    for ks in range(8):
        a(f"s_waitcnt lgkmcnt({14-2*ks})")
        c = "0" if ks == 0 else vr(32, 16)
        a(f"v_mfma_f32_32x32x16_bf16 {vr(32,16)}, {vr(64+8*ks,4)}, {vr(68+8*ks,4)}, {c}")
    a(f"""
    v_lshlrev_b32 v6, 4, v1
    v_add_u32 v6, s50, v6
    s_cmp_lg_u32 s49, 0
    s_cbranch_scc1 L1_s_x1
    ds_write_b128 v6, v[40:43] offset:{EX0}
    ds_write_b32 v3, v44 offset:{EX0+1024}
    s_waitcnt lgkmcnt(0)
    s_barrier
    ds_read_b128 v[48:51], v6 offset:{EX1}
    ds_read_b128 v[52:55], v6 offset:{EX1+1024}
    v_subrev_u32 v10, 11, v1
    v_lshrrev_b32 v11, 2, v10
    v_and_b32 v10, 3, v10
    v_lshl_add_u32 v10, v11, 3, v10
    v_add_u32 v10, 144, v10
    v_add_u32 v11, 129, v1
    v_cmp_gt_u32 vcc, 11, v1
    v_cndmask_b32 v10, v10, v11, vcc
    v_cmp_gt_u32 vcc, 7, v1
    v_cndmask_b32 v10, v10, v1, vcc
    v_lshlrev_b32 v10, 4, v10
    v_add_u32 v10, s50, v10
    v_mov_b32 v16, 0
    v_mov_b32 v17, 0
    v_mov_b32 v18, 0
    v_mov_b32 v19, 0
    s_mov_b64 exec, 0x7ffffff
    ds_write_b128 v10, v[16:19] offset:{7*KCP}
    s_mov_b64 exec, -1
    ; chunk 135 - l
    v_lshlrev_b32 v10, 4, v1
    s_add_u32 s9, s50, {7*KCP + 135*16}
    v_sub_u32 v10, s9, v10
    s_waitcnt lgkmcnt(1)
    """)
    for r in range(8):
        a(f"v_add_f32 v{32+r}, v{32+r}, v{48+r}")
    for k in range(4):
        a(f"v_cvt_pk_bf16_f32 v{56+k}, v{32+7-2*k}, v{32+6-2*k}")
    a(f"""
    ds_write_b128 v10, v[56:59]
    s_branch L1_s_x2
    L1_s_x1:
    s_nop 7
    s_nop 7
    ds_write_b128 v6, v[32:35] offset:{EX1}
    ds_write_b128 v6, v[36:39] offset:{EX1+1024}
    v_lshlrev_b32 v7, 2, v1
    v_add_u32 v7, s50, v7
    s_waitcnt lgkmcnt(0)
    s_barrier
    ds_read_b128 v[48:51], v6 offset:{EX0}
    ds_read_b32 v52, v7 offset:{EX0+1024}
    ; chunk 71 - l
    v_lshlrev_b32 v10, 4, v1
    s_add_u32 s9, s50, {7*KCP + 71*16}
    v_sub_u32 v10, s9, v10
    v_and_b32 v11, 3, v1
    v_lshlrev_b32 v11, 7, v11
    v_bfe_u32 v12, v1, 2, 3
    v_lshlrev_b32 v12, 1, v12
    v_sub_u32 v11, v11, v12
    v_lshrrev_b32 v12, 5, v1
    v_lshlrev_b32 v12, 5, v12
    v_sub_u32 v11, v11, v12
    s_add_u32 s9, s50, {7*KCP + 140*16}
    v_add_u32 v11, s9, v11
    s_waitcnt lgkmcnt(0)
    """)
    for r in range(5):
        a(f"v_add_f32 v{40+r}, v{40+r}, v{48+r}")
    a(f"""
    v_cvt_pk_bf16_f32 v56, v42, v42
    v_cvt_pk_bf16_f32 v57, v41, v41
    v_cvt_pk_bf16_f32 v58, v41, v40
    v_cvt_pk_bf16_f32 v59, v40, v40
    v_cvt_pk_bf16_f32 v60, v43, v44
    ds_write_b128 v10, v[56:59]
    ds_write_b16 v11, v60 offset:62
    ds_write_b16_d16_hi v11, v60 offset:46
    v_mov_b32 v60, 0
    v_and_b32 v61, 0xffff0000, v56
    v_mov_b32 v62, v56
    v_mov_b32 v63, v56
    v_mov_b32 v12, s50
    s_mov_b32 exec_lo, 0
    s_mov_b32 exec_hi, 0x80000000
    ds_write_b128 v12, v[60:63] offset:{7*KCP + 7*16}
    s_mov_b64 exec, -1
    L1_s_x2:
    """)
    a(f"""
    s_mov_b32 s9, 0x05040100
    s_mov_b32 s10, 0x07060302
    s_waitcnt vmcnt(0)
    v_perm_b32 v16, v242, v240, s9
    v_perm_b32 v17, v246, v244, s9
    v_perm_b32 v18, v242, v240, s10
    v_perm_b32 v19, v246, v244, s10
    v_perm_b32 v20, v243, v241, s9
    v_perm_b32 v21, v247, v245, s9
    v_perm_b32 v22, v243, v241, s10
    v_perm_b32 v23, v247, v245, s10
    ds_write_b64 v248, v[16:17]
    ds_write_b64 v248, v[18:19] offset:{XPC}
    ds_write_b64 v248, v[20:21] offset:{2*XPC}
    ds_write_b64 v248, v[22:23] offset:{3*XPC}
    s_waitcnt lgkmcnt(0)
    s_barrier
    """)
    a(f"""
    v_lshrrev_b32 v10, 7, v0
    v_and_b32 v11, 127, v0
    v_mul_u32_u24 v12, {XPC}, v10
    v_add_u32 v12, {XP0}, v12
    """)
    for j in range(3):
        a(f"""
        v_add_u32 v13, {62+j}, v11
        v_and_b32 v14, 3, v13
        v_mul_u32_u24 v14, {XPP}, v14
        v_lshrrev_b32 v13, 2, v13
        v_lshl_add_u32 v14, v13, 4, v14
        v_add_u32 v{24+j}, v14, v12
        """)
    a(f"""
    ds_read_b64 v[128:129], v24 offset:8
    ds_read_b128 v[130:133], v25
    ds_read_b64 v[134:135], v26
    v_mul_u32_u24 v12, {CHR}, v10
    v_lshl_add_u32 v27, v11, 4, v12
    """)
    for p in range(3):
        a(f"ds_read_b128 {vr(64+8*p,4)}, v6 offset:{7*KCP + 1024*p}")
        a(f"ds_read_b128 {vr(68+8*p,4)}, v6 offset:{7*KCP + 1024*p + 16}")
    a("s_waitcnt lgkmcnt(6)")
    for k in range(8):
        a(f"v_lshlrev_b32 v{136+2*k}, 16, v{128+k}")
        a(f"v_and_b32 v{137+2*k}, 0xffff0000, v{128+k}")
    X = lambda i: 136 + 4 + i
    a(f"""
    v_add_f32 v152, v{X(-3)}, v{X(-2)}
    v_add_f32 v153, v{X(-1)}, v{X(0)}
    v_add_f32 v154, v{X(1)}, v{X(2)}
    v_add_f32 v152, v152, v{X(3)}
    v_add_f32 v153, v153, v154
    v_add_f32 v152, v152, v153
    """)
    for e in range(1, 8):
        a(f"v_sub_f32 v{160+e}, v{X(e+3)}, v{X(e-4)}")
    for e in range(8):
        a(f"v_add_f32 v{168+e}, v{X(e-4)}, v{X(e+4)}")
    for e in range(1, 8):
        a(f"v_add_f32 v{152+e}, v{152+e-1}, v{160+e}")
    for e in range(8):
        a(f"v_add_f32 v{168+e}, v{168+e}, v{152+e}")
    for k in range(4):
        a(f"v_cvt_pk_bf16_f32 v{176+k}, v{152+2*k}, v{153+2*k}")
        a(f"v_cvt_pk_bf16_f32 v{180+k}, v{168+2*k}, v{169+2*k}")
    a(f"""
    ds_write_b128 v27, v[176:179] offset:{S_OFF + 48}
    ds_write_b128 v27, v[180:183] offset:{S_OFF + S_LEN + 48}
    s_cmp_lg_u32 s49, 0
    s_cbranch_scc1 L1_s_c1
    """)
    a(f"""
    v_mov_b32 v16, 0
    v_mov_b32 v17, 0
    v_mov_b32 v18, 0
    v_mov_b32 v19, 0
    s_mov_b64 exec, 7
    ds_write_b128 v6, v[16:19] offset:{S_OFF}
    ds_write_b128 v6, v[16:19] offset:{S_OFF + S_LEN}
    s_mov_b64 exec, -1
    s_waitcnt lgkmcnt(4)
    """)
    for p in range(3):
        D = 64 + 8 * p
        T = 96 + 8 * p
        for k in range(6):
            a(f"v_mov_b32 v{T+k}, v{D+1+k}")
        if p == 2:
            a("s_mov_b32 exec_hi, 0xfff")
        a(f"ds_write_b128 v6, {vr(D+2,4)} offset:{3*KCP + 1024*p}")
        a(f"ds_write_b128 v6, {vr(T,4)} offset:{5*KCP + 1024*p}")
        a(f"ds_write_b128 v6, {vr(T+2,4)} offset:{1*KCP + 1024*p}")
    a("""
    s_mov_b64 exec, -1
    s_branch L1_s_c2
    L1_s_c1:
    s_waitcnt lgkmcnt(2)
    """)
    for p in range(3):
        D = 64 + 8 * p
        A = 96 + 16 * p
        B = A + 8
        for k in range(6):
            a(f"v_alignbit_b32 v{A+k}, v{D+k+1}, v{D+k}, 16")
        for k in range(6):
            a(f"v_alignbit_b32 v{B+k}, v{D+k+2}, v{D+k+1}, 16")
        if p == 2:
            a("s_mov_b32 exec_hi, 0xfff")
        a(f"ds_write_b128 v6, {vr(A,4)} offset:{6*KCP + 1024*p}")
        a(f"ds_write_b128 v6, {vr(B,4)} offset:{4*KCP + 1024*p}")
        a(f"ds_write_b128 v6, {vr(A+2,4)} offset:{2*KCP + 1024*p}")
        a(f"ds_write_b128 v6, {vr(B+2,4)} offset:{0*KCP + 1024*p}")
    a("""
    s_mov_b64 exec, -1
    L1_s_c2:
    """)
    a(f"""
    v_and_b32 v10, 7, v1
    v_mul_u32_u24 v10, {KCP}, v10
    v_lshrrev_b32 v11, 4, v1              ; G
    v_bfe_u32 v12, v1, 3, 1               ; i1
    v_sub_u32 v13, v11, v12
    v_lshlrev_b32 v13, 4, v13
    v_add3_u32 v10, v10, v13, s50
    s_lshl_b32 s9, s49, 6
    s_sub_u32 s9, 80, s9
    v_add_u32 v4, s9, v10                 ; vA
    s_lshl_b32 s9, s49, 8
    s_add_u32 s9, s9, {140*16 + 16}
    v_add_u32 v5, s9, v10
    s_mul_i32 s9, s48, {XPC}
    s_add_u32 s9, s9, {XP0}
    s_lshl_b32 s10, s49, 4
    s_sub_u32 s9, s9, s10
    v_mul_u32_u24 v13, {XPP}, v11
    v_and_b32 v14, 15, v1
    v_lshl_add_u32 v13, v14, 4, v13
    v_add_u32 v7, s9, v13                 ; vB
    v_bfe_u32 v13, v1, 2, 2
    v_lshl_add_u32 v13, v11, 3, v13
    v_lshlrev_b32 v13, 6, v13
    v_and_b32 v14, 3, v1
    v_lshl_add_u32 v13, v14, 3, v13
    s_lshl_b32 s9, s49, 5
    s_sub_u32 s9, s50, s9
    s_add_u32 s9, s9, {S_OFF}
    v_add_u32 v8, s9, v13                 ; vS
    s_waitcnt lgkmcnt(0)
    s_barrier
    """)
    ACC = lambda rho, ct: 32 + 4 * (4 * rho + ct)
    NB = 3
    def fr(m):
        return 64 + 24 * (m % NB)
    def cts(m):
        return [ct for ct in range(4) if (ct >= 2 or m <= 8 * ct + 7)]
    def creads(m):
        f = fr(m)
        a(f"ds_read_b128 {vr(f,4)}, v4 offset:{2080 - 128*m}")
        for ct in cts(m):
            a(f"ds_read_b128 {vr(f+8+4*ct,4)}, v7 offset:{(16*ct + 16 - 2*m)*16}")
        a(f"ds_read_b128 {vr(f+4,4)}, v4 offset:{2080 - 128*m - 32}")
        return 2 + len(cts(m))
    def freads():
        for tp in range(2):
            a(f"ds_read_b128 {vr(160+8*tp,4)}, v5 offset:{128*tp + 32}")
            a(f"ds_read_b128 {vr(164+8*tp,4)}, v5 offset:{128*tp}")
            for rho in range(2):
                for h in range(2):
                    off = tp * S_LEN + 256 * h + 32 * rho + 64 - 16 * (tp + 1)
                    a(f"ds_read_b64_tr_b16 {vr(176+8*tp+4*rho+2*h,2)}, v8 offset:{off}")
        return 12
    pend = [creads(0), creads(1)]
    for m in range(17):
        if m + 2 <= 16: pend.append(creads(m + 2))
        elif m == 15: pend.append(freads())
        pend.pop(0)
        a(f"s_waitcnt lgkmcnt({min(15, sum(pend))})")
        f = fr(m)
        for rho in range(2):
            for ct in cts(m):
                c = "0" if m == 0 else vr(ACC(rho, ct), 4)
                a(f"v_mfma_f32_16x16x32_bf16 {vr(ACC(rho,ct),4)}, {vr(f+4*rho,4)}, {vr(f+8+4*ct,4)}, {c}")
    a("s_waitcnt lgkmcnt(0)")
    for tp in range(2):
        for rho in range(2):
            for ct in (2, 3):
                a(f"v_mfma_f32_16x16x32_bf16 {vr(ACC(rho,ct),4)}, {vr(176+8*tp+4*rho,4)}, {vr(160+8*tp+4*(ct-2),4)}, {vr(ACC(rho,ct),4)}")
    a(f"""
    v_and_b32 v10, 15, v1
    v_mul_u32_u24 v10, 144, v10
    v_lshrrev_b32 v11, 4, v1
    v_lshl_add_u32 v10, v11, 4, v10
    s_mul_i32 s9, s44, {YP}
    v_add_u32 v10, s9, v10
    v_lshrrev_b32 v12, 3, v0
    v_mul_u32_u24 v13, 144, v12
    v_and_b32 v14, 7, v0
    v_lshl_add_u32 v13, v14, 4, v13       ; vY
    v_bfe_u32 v14, v0, 1, 2
    v_mul_u32_u24 v14, {XPP}, v14
    v_lshl_add_u32 v14, v12, 4, v14
    v_and_b32 v15, 1, v0
    v_lshl_add_u32 v14, v15, 3, v14
    v_add_u32 v14, {XP0 + 256}, v14       ; vX
    v_add_u32 v15, {4*YP}, v13
    s_lshl_b32 s9, s47, 14
    s_add_u32 s9, s9, {WS_BG}
    v_lshlrev_b32 v16, 5, v0
    v_add_u32 v16, s9, v16
    s_lshl_b32 s56, s54, 16
    s_and_b32 s57, s54, 0xffff0000
    s_lshl_b32 s58, s55, 16
    s_and_b32 s59, s55, 0xffff0000
    s_barrier
    """)
    for rho in range(2):
        for ct in range(4):
            a(f"ds_write_b128 v10, {vr(ACC(rho,ct),4)} offset:{16*ct*144 + 64*rho}")
    a("""
    s_waitcnt lgkmcnt(0)
    s_barrier
    """)
    for ch in range(4):
        a(f"ds_read_b128 {vr(64+4*ch,4)}, v13 offset:{ch*YP}")
        a(f"ds_read_b128 {vr(80+4*ch,4)}, v15 offset:{ch*YP}")
        a(f"ds_read_b64 {vr(96+2*ch,2)}, v14 offset:{ch*XPC}")
    for ch in range(4):
        a(f"s_waitcnt lgkmcnt({9-3*ch})")
        for t in range(4):
            a(f"v_add_f32 v{64+4*ch+t}, v{64+4*ch+t}, v{80+4*ch+t}")
        for k in range(2):
            a(f"v_lshlrev_b32 v{104+2*k}, 16, v{96+2*ch+k}")
            a(f"v_and_b32 v{105+2*k}, 0xffff0000, v{96+2*ch+k}")
        for t in range(4):
            a(f"v_fmac_f32 v{64+4*ch+t}, s{56+ch}, v{104+t}")
    for t in range(4):
        a(f"v_cvt_pk_bf16_f32 v{112+2*t}, v{64+t}, v{68+t}")
        a(f"v_cvt_pk_bf16_f32 v{113+2*t}, v{72+t}, v{76+t}")
    a("""
    global_store_dwordx4 v16, v[112:115], s[34:35]
    global_store_dwordx4 v16, v[116:119], s[34:35] offset:16
    """)

K2_KV = 65536
K2_EX = K2_KV + 17408
LDS2 = K2_EX + 16384

def gen_k2(a):
    a(f"""
    .globl {K2}
    .p2align 8
    .type {K2},@function
    {K2}:
    s_cmp_ge_u32 s2, 256
    s_cbranch_scc1 L2_end
    s_load_dwordx2 s[4:5], s[0:1], 16        ; wo
    s_load_dwordx2 s[6:7], s[0:1], 88        ; out
    s_load_dwordx2 s[34:35], s[0:1], 104     ; ws
    v_lshrrev_b32 v2, 6, v0
    v_and_b32 v1, 63, v0
    v_readfirstlane_b32 s44, v2
    s_and_b32 s45, s2, 7                     ; xcd
    s_lshr_b32 s46, s2, 3                    ; idx 0..31
    s_lshr_b32 s47, s45, 1
    s_lshl_b32 s47, s47, 3
    s_lshr_b32 s9, s46, 2
    s_add_u32 s47, s47, s9
    s_and_b32 s48, s45, 1
    s_lshl_b32 s48, s48, 2
    s_and_b32 s9, s46, 3
    s_add_u32 s48, s48, s9
    s_and_b32 s49, s44, 1                    ; tb
    s_lshr_b32 s50, s44, 1                   ; hh
    v_lshlrev_b32 v3, 4, v1                  ; lane*16
    ; kv linear loads: piece = w + 4i (i<9; 34 pieces)
    s_lshl_b32 s9, s44, 10
    s_add_u32 s9, s9, {WS_KV}
    v_add_u32 v4, s9, v3
    s_lshl_b32 s9, s47, 1
    s_add_u32 s9, s9, s49
    s_lshl_b32 s9, s9, 5
    s_lshl_b32 s10, s50, 4
    s_add_u32 s9, s9, s10
    s_lshl_b32 s9, s9, 10
    v_add_u32 v5, s9, v3
    v_lshrrev_b32 v10, 2, v1
    v_and_b32 v10, 4, v10
    v_and_b32 v11, 7, v1
    v_xor_b32 v10, v10, v11
    v_lshlrev_b32 v10, 4, v10
    v_lshrrev_b32 v12, 3, v1
    v_lshl_add_u32 v6, v12, 10, v10
    s_lshl_b32 s51, s48, 7
    s_lshl_b32 s9, s44, 13
    s_add_u32 s51, s51, s9
    s_lshl_b32 s52, s44, 10
    s_waitcnt lgkmcnt(0)
    """)
    srd(a, 36, 4, 512 * 512 * 2)
    for i in range(8):
        a(f"v_add_u32 v10, {4096*i}, v4" if i else "v_mov_b32 v10, v4")
        a(f"global_load_dwordx4 {vr(64+4*i,4)}, v10, s[34:35]")
    a(f"""
    v_add_u32 v10, {32768}, v4
    s_cmp_ge_u32 s44, 2
    s_cbranch_scc1 L2_k9
    global_load_dwordx4 v[96:99], v10, s[34:35]
    s_branch L2_k9b
    L2_k9:
    global_load_dwordx4 v[96:99], v4, s[34:35]
    L2_k9b:
    """)
    def wo_dma(i):
        a(f"""
        s_add_u32 m0, s52, {4096*i}
        s_add_u32 s9, s51, {32768*i}
        buffer_load_dwordx4 v6, s[36:39], s9 offen lds
        """)
    def pq_load(j):
        if j % 4 == 0:
            a(f"v_add_u32 v10, {1024*j}, v5")
        a(f"global_load_dwordx4 {vr(128+4*j,4)}, v10, s[34:35] offset:{1024*(j%4)}")
    for j in range(8): pq_load(j)
    for i in (0, 8, 1, 9, 2, 10, 3, 11): wo_dma(i)
    for j in range(8, 16): pq_load(j)
    for i in (4, 12, 5, 13, 6, 14, 7, 15): wo_dma(i)
    a(f"""
    s_lshl_b32 s9, s48, 4
    s_lshl_b32 s10, s50, 3
    s_add_u32 s9, s9, s10
    s_lshl_b32 s9, s9, 14
    s_lshl_b32 s10, s47, 6
    s_lshl_b32 s11, s49, 5
    s_add_u32 s53, s10, s11
    s_lshl_b32 s10, s53, 3
    s_add_u32 s9, s9, s10
    s_add_u32 s9, s9, {WS_BG}
    v_and_b32 v11, 31, v1
    v_lshrrev_b32 v12, 5, v1
    v_lshlrev_b32 v13, 14, v12
    v_lshl_add_u32 v13, v11, 3, v13
    v_add_u32 v13, s9, v13
    """)
    for q in range(4):
        if q: a(f"v_add_u32 v13, 0x8000, v13")
        a(f"global_load_dwordx2 {vr(192+2*q,2)}, v13, s[34:35]")
    a(f"""
    s_lshl_b32 s9, s53, 2
    s_add_u32 s9, s9, {WS_G}
    v_lshlrev_b32 v13, 2, v11
    v_add_u32 v13, s9, v13
    global_load_dword v200, v13, s[34:35]
    s_lshl_b32 s9, s53, 10
    s_lshl_b32 s10, s48, 7
    s_add_u32 s9, s9, s10
    s_lshl_b32 s10, s50, 6
    s_add_u32 s9, s9, s10
    v_lshlrev_b32 v13, 10, v11
    v_lshl_add_u32 v13, v12, 3, v13
    v_add_u32 v201, s9, v13
    ; kv image write addr: K2_KV + (piece*1024 + lane*16)/2
    s_lshl_b32 s9, s44, 9
    s_add_u32 s9, s9, {K2_KV}
    v_lshlrev_b32 v13, 3, v1
    v_add_u32 v7, s9, v13
    ; kv frag read addr: K2_KV + hh*16*544 + rowpos*32 + 16g ; row=l&31 ; rowpos = row<16 ? 8(row>>3) + 2(row&3) + ((row>>2)&1) : 16
    v_and_b32 v13, 8, v1
    v_and_b32 v14, 3, v1
    v_lshl_add_u32 v13, v14, 1, v13
    v_bfe_u32 v14, v1, 2, 1
    v_add_u32 v13, v13, v14
    v_cmp_gt_u32 vcc, 16, v11
    v_cndmask_b32 v13, 16, v13, vcc
    v_lshlrev_b32 v13, 5, v13
    v_lshl_add_u32 v13, v12, 4, v13
    s_mul_i32 s9, s50, {16*544}
    s_add_u32 s9, s9, {K2_KV}
    v_add_u32 v8, s9, v13
    v_bfe_u32 v13, v1, 2, 2
    v_lshl_add_u32 v14, v12, 2, v13
    v_lshlrev_b32 v14, 7, v14
    v_lshrrev_b32 v13, 1, v13
    v_lshl_add_u32 v14, v13, 6, v14
    v_bfe_u32 v13, v1, 4, 1
    v_lshl_add_u32 v14, v13, 5, v14
    v_and_b32 v13, 3, v1
    v_lshl_add_u32 v14, v13, 3, v14
    s_lshl_b32 s9, s50, 15
    v_add_u32 v9, s9, v14                    ; cb = 0
    v_xor_b32 v10, 64, v9                    ; cb = 1
    s_mov_b32 s54, {f32(1e-6)}
    """)
    for i in range(9):
        a(f"s_waitcnt vmcnt({45-i})")
        a(f"v_cvt_pk_bf16_f32 v{100+2*(i%2)}, v{64+4*i}, v{65+4*i}")
        a(f"v_cvt_pk_bf16_f32 v{101+2*(i%2)}, v{66+4*i}, v{67+4*i}")
        if i < 8:
            a(f"ds_write_b64 v7, {vr(100+2*(i%2),2)} offset:{2048*i}")
        else:
            a(f"""
            s_cmp_ge_u32 s44, 2
            s_cbranch_scc1 L2_k10
            ds_write_b64 v7, {vr(100+2*(i%2),2)} offset:{2048*i}
            L2_k10:
            """)
    a("""
    s_waitcnt vmcnt(21) lgkmcnt(0)
    s_barrier
    """)
    def rd_kv(j): a(f"ds_read_b128 {vr(64+4*(j%2),4)}, v8 offset:{544*j}")
    def rd_wo(j):
        for cb in range(2):
            for h2 in range(2):
                a(f"ds_read_b64_tr_b16 {vr(112+8*(j%2)+4*cb+2*h2,2)}, v{9+cb} offset:{2048*j + 1024*h2}")
    def m1(j): a(f"v_mfma_f32_32x32x16_bf16 {vr(72+16*(j%2),16)}, {vr(64+4*(j%2),4)}, {vr(128+4*j,4)}, 0")
    def norm(j):
        D = 72 + 16 * (j % 2); O = 104 + 4 * (j % 2)
        a(f"v_add_f32 v48, s54, v{D+8}")
        a(f"v_rcp_f32 v48, v48")
        for r in range(8):
            a(f"v_mul_f32 v{D+r}, v48, v{D+r}")
        for k in range(4):
            a(f"v_cvt_pk_bf16_f32 v{O+k}, v{D+2*k}, v{D+2*k+1}")
    def m2(j):
        for cb in range(2):
            c = "0" if j == 0 else vr(16 + 16 * cb, 16)
            a(f"v_mfma_f32_32x32x16_bf16 {vr(16+16*cb,16)}, {vr(112+8*(j%2)+4*cb,4)}, {vr(104+4*(j%2),4)}, {c}")
    rd_kv(0); rd_kv(1); rd_wo(0)
    a("s_waitcnt lgkmcnt(5)")
    m1(0)
    for j in range(16):
        if j + 1 < 16:
            if j + 1 == 8:
                a("s_waitcnt vmcnt(13)")
            a("s_waitcnt lgkmcnt(4)")
            m1(j + 1)
        if j + 2 < 16: rd_kv(j + 2)
        if j + 1 == 8:
            a("s_waitcnt vmcnt(5)")
            a("s_barrier")
        norm(j)
        if j + 1 < 16:
            rd_wo(j + 1)
            n = 4 + (1 if j + 2 < 16 else 0)
            a(f"s_waitcnt lgkmcnt({n})")
        else:
            a("s_waitcnt lgkmcnt(0)")
        m2(j)
    a(f"""
    s_lshl_b32 s9, s44, 12
    s_add_u32 s9, s9, {K2_EX}
    v_add_u32 v48, s9, v3
    s_xor_b32 s10, s44, 2
    s_lshl_b32 s10, s10, 12
    s_add_u32 s10, s10, {K2_EX}
    v_add_u32 v49, s10, v3
    s_cmp_eq_u32 s50, 0
    s_cbranch_scc1 L2_e0
    s_nop 7
    s_nop 7
    """)
    for q in range(4): a(f"ds_write_b128 v48, {vr(16+4*q,4)} offset:{1024*q}")
    for r in range(16): a(f"v_mov_b32 v{16+r}, v{32+r}")
    a("""
    s_branch L2_e1
    L2_e0:
    s_nop 7
    s_nop 7
    """)
    for q in range(4): a(f"ds_write_b128 v48, {vr(32+4*q,4)} offset:{1024*q}")
    a("""
    L2_e1:
    s_waitcnt lgkmcnt(0)
    s_barrier
    """)
    for q in range(4): a(f"ds_read_b128 {vr(64+4*q,4)}, v49 offset:{1024*q}")
    a("s_waitcnt vmcnt(0)")
    for q in range(4):
        a(f"s_waitcnt lgkmcnt({3-q})")
        for k in range(2):
            a(f"v_lshlrev_b32 v{80+2*k}, 16, v{192+2*q+k}")
            a(f"v_and_b32 v{81+2*k}, 0xffff0000, v{192+2*q+k}")
        for r in range(4):
            a(f"v_add_f32 v{16+4*q+r}, v{16+4*q+r}, v{64+4*q+r}")
        for r in range(4):
            a(f"v_sub_f32 v{16+4*q+r}, v{16+4*q+r}, v{80+r}")
        for r in range(4):
            a(f"v_fmac_f32 v{80+r}, v200, v{16+4*q+r}")
        a(f"v_cvt_pk_bf16_f32 v{84+2*q}, v80, v81")
        a(f"v_cvt_pk_bf16_f32 v{85+2*q}, v82, v83")
        a(f"global_store_dwordx2 v201, {vr(84+2*q,2)}, s[6:7] offset:{16*q}")
    a("""
    L2_end:
    s_endpgm
    """)

def kd(name, nv, ns):
    return f"""
.p2align 6
.amdhsa_kernel {name}
  .amdhsa_next_free_vgpr {nv}
  .amdhsa_next_free_sgpr {ns}
  .amdhsa_accum_offset {(nv + 3) // 4 * 4}
  .amdhsa_group_segment_fixed_size 0
  .amdhsa_kernarg_size 112
  .amdhsa_user_sgpr_count 2
  .amdhsa_user_sgpr_kernarg_segment_ptr 1
  .amdhsa_system_sgpr_workgroup_id_x 1
  .amdhsa_float_denorm_mode_32 3
.end_amdhsa_kernel
"""

def main(path):
    hdr = open("cdna_kernels/" + NAME + ".s.ref").read().split("; Override launch")[0]
    a = Asm()
    gen_k1(a)
    body1 = a.finalize()
    b = Asm()
    gen_k2(b)
    body2 = b.finalize()
    out = hdr
    out += f"; @launch kernel={K1} grid=(256,1,1) block=(512,1,1) lds={LDS1}\n"
    out += f"; @launch kernel={K2} grid=(256,1,1) block=(256,1,1) lds={LDS2}\n"
    out += '.amdgcn_target "amdgcn-amd-amdhsa--gfx950"\n.text\n'
    out += body1 + body2
    out += '.section .rodata,"a"\n' + kd(K1, 256, 64) + kd(K2, 208, 64)
    open(path, "w").write(out)
    print("auto nop states:", a.auto_nop_states, b.auto_nop_states)

if __name__ == "__main__":
    main(sys.argv[1] if len(sys.argv) > 1 else "cdna_kernels/" + NAME + ".s")
```

```python
import sys, struct
from asmlib import Asm

def f32(x):
    return "0x%08x" % struct.unpack("<I", struct.pack("<f", x))[0]

NAME = "gated_mix__linear_attn_block__ssm_conv_s4d__prompt"
K1 = NAME + "_kernel"

WS_PQ = 0
WS_BG = 2 << 20
WS_Z = 4 << 20
ZS = 3840
WS_ST = 6 << 20

LOG2E = 1.4426950408889634
L2E_HI = struct.unpack("<f", struct.pack("<I", 0x3FB8AA00))[0]
L2E_LO = LOG2E - L2E_HI
LDS = 163840
SPIN_MAX = 0x4000
OPT = {}

STAMP = False
STI = "s_memtime"
_st = {"n": 0}
def stamp(a, at=None):
    if not STAMP: return
    if at is not None: _st["n"] = at
    n = _st["n"]; _st["n"] += 1
    assert n < 21, n
    a(f"""
    {STI} s[66:67]
    s_waitcnt lgkmcnt(0)
    s_mov_b32 s{70+n}, s66
    """)
def stamp_end(a):
    if not STAMP: return
    a(f"""
    s_waitcnt vmcnt(0)
    {STI} s[66:67]
    s_memrealtime s[64:65]
    s_waitcnt lgkmcnt(0)
    s_mov_b32 s91, s66
    s_mov_b64 exec, 1
    s_lshl_b32 s9, s2, 3
    s_add_u32 s9, s9, s44
    s_lshl_b32 s9, s9, 7
    s_add_u32 s9, s9, {WS_ST}
    v_mov_b32 v10, s9
    """)
    for q in range(6):
        src = [70+4*q+i for i in range(4)]
        if q == 5: src = [90, 91, 68, 64]
        for i in range(4): a(f"v_mov_b32 v{12+i}, s{src[i]}")
        a(f"global_store_dwordx4 v10, v[12:15], s[34:35] offset:{16*q}")
        a("s_nop 1")

def vr(b, n):
    return f"v[{b}:{b+n-1}]" if n > 1 else f"v{b}"

def srd(a, d, base, nbytes):
    a(f"""
    s_mov_b32 s{d}, s{base}
    s_and_b32 s{d+1}, s{base+1}, 0xffff
    s_mov_b32 s{d+2}, {nbytes}
    s_mov_b32 s{d+3}, 0x00020000
    """)

_lbl = [0]
def label(p):
    _lbl[0] += 1
    return f"L{p}_{_lbl[0]}"

class VM:
    def __init__(self, a): self.a = a; self.ops = []
    def issue(self, tag, n=1): self.ops += [tag] * n
    def has(self, tags): return any(t in tags for t in self.ops)
    def wait(self, tags, extra=""):
        if isinstance(tags, str): tags = [tags]
        last = max(i for i, t in enumerate(self.ops) if t in tags)
        n = len(self.ops) - 1 - last
        assert n <= 63
        self.a(f"s_waitcnt vmcnt({n}) {extra}".strip())

class LG:
    def __init__(self, a): self.a = a; self.ops = []; self.done = 0
    def rd(self, ins):
        from asmlib import Ins
        self.a(ins); self.ops.append(Ins(ins).wr)
    def need(self, ins):
        from asmlib import Ins
        rd = Ins(ins).rd
        last = -1
        for i in range(self.done, len(self.ops)):
            if self.ops[i] & rd: last = i
        if last >= 0:
            n = min(15, len(self.ops) - 1 - last)
            self.a(f"s_waitcnt lgkmcnt({n})")
            self.done = len(self.ops) - n
        self.a(ins)
    def sync(self): self.done = len(self.ops)

def flags_check(a, vt0, vt1):
    l0, l1 = label("g"), label("g")
    a(f"""
    v_and_b32 v{vt0}, 7, v1
    v_lshlrev_b32 v{vt0}, 2, v{vt0}
    s_mov_b32 s10, 0
    s_mov_b32 s9, 0x01010101
    {l0}:
    global_load_dword v{vt1}, v{vt0}, s[32:33] sc1
    s_add_u32 s10, s10, 1
    s_waitcnt vmcnt(0)
    v_cmp_ne_u32 vcc, s9, v{vt1}
    s_cmp_gt_u32 s10, {SPIN_MAX}
    s_cbranch_scc1 {l1}
    s_cbranch_vccz {l1}
    s_sleep 8
    s_branch {l0}
    {l1}:
    """)

def gate_verify(a, vloaded, vt0, vt1):
    lg = label("gk")
    a(f"""
    s_mov_b32 s9, 0x01010101
    v_cmp_ne_u32 vcc, s9, v{vloaded}
    s_cbranch_vccz {lg}
    """)
    flags_check(a, vt0, vt1)
    a(f"{lg}:")

def store_flag(a, saddr, vt0, vt1):
    a(f"""
    v_mov_b32 v{vt0}, {saddr}
    v_mov_b32 v{vt1}, 1
    s_mov_b64 exec, 1
    global_store_dword v{vt0}, v{vt1}, s[34:35] sc1
    s_mov_b64 exec, -1
    """)

def poison_test(a, regs, vt):
    regs = list(regs)
    a(f"v_max3_u32 v{vt}, v{regs[0]}, v{regs[1]}, v{regs[2]}" if len(regs) >= 3 else f"v_max_u32 v{vt}, v{regs[0]}, v{regs[1]}")
    rest = regs[3:] if len(regs) >= 3 else []
    while len(rest) >= 2:
        a(f"v_max3_u32 v{vt}, v{vt}, v{rest[0]}, v{rest[1]}"); rest = rest[2:]
    if rest: a(f"v_max_u32 v{vt}, v{vt}, v{rest[0]}")
    a(f"v_cmp_eq_u32 vcc, -1, v{vt}")

RING = 131072

def gen_k1(a):
    SUBEXP = "s_lshr_b32 s46, s2, 4" if RBIT == 3 else "s_bfe_u32 s46, s2, 0x40003"
    a(f"""
    .globl {K1}
    .p2align 8
    .type {K1},@function
    {K1}:
    s_cmp_ge_u32 s2, 256
    s_cbranch_scc1 L_end
    s_load_dwordx4 s[4:7], s[0:1], 0
    s_load_dwordx16 s[16:31], s[0:1], 32
    s_load_dwordx4 s[32:35], s[0:1], 96
    s_load_dwordx2 s[12:13], s[0:1], 16
    """)
    if STAMP:
        a(f"""
        s_memrealtime s[68:69]
        {STI} s[70:71]
        """)
    a(f"""
    v_lshrrev_b32 v2, 6, v0
    v_and_b32 v1, 63, v0
    v_readfirstlane_b32 s44, v2
    s_and_b32 s45, s2, 7
    {SUBEXP}
    """)
    if WARM == 2:
        a(f"""
        s_lshr_b32 s9, s2, 3
        s_lshl_b32 s9, s9, 3
        s_add_u32 s9, s9, s44
        s_and_b32 s9, s9, 63
        s_mov_b64 exec, 0
        s_branch L_wdisp
        L_wret:
        s_mov_b64 exec, -1
        """)
    if WARM == 1:
        a(f"""
        s_getpc_b64 s[100:101]
        s_and_b32 s100, s100, 0xffffff00
        v_lshlrev_b32 v3, 4, v0
        s_and_b32 s9, s46, 3
        s_lshl_b32 s9, s9, 13
        v_add_u32 v3, s9, v3
        v_min_u32 v3, CODE_END - {K1} - 16, v3
        v_mov_b32 v5, s101
        v_add_co_u32 v4, vcc, s100, v3
        v_addc_co_u32 v5, vcc, 0, v5, vcc
        global_load_dwordx4 v[228:231], v[4:5], off
        """)
    a(f"""
    v_lshrrev_b32 v254, 3, v1
    v_and_b32 v11, 7, v1
    s_and_b32 s11, s44, 3
    s_lshl_b32 s97, s11, 11              ; L*2048
    s_bitcmp1_b32 s2, {RBIT}
    s_cbranch_scc0 L_gemm
    """)
    ssm_first(a)
    if WARM == 2: a.raw("@WDISP@")
    a("L_gemm:")
    gemm_first(a)
    gen_gemm_B(a)
    gen_gemm_A(a)
    gen_ssm(a)
    gen_phase2(a)
    a("""
    L_end:
    s_endpgm
    CODE_END:
    """)

def common_late(a):
    a(f"""
    s_and_b32 s63, s46, 3                ; cq
    s_lshr_b32 s62, s46, 2
    s_lshl_b32 s62, s62, 1
    s_bfe_u32 s9, s2, {0x10000 + RBIT}
    s_add_u32 s62, s62, s9
    s_lshl_b32 s9, s45, 3
    s_add_u32 s62, s62, s9               ; tt
    v_lshrrev_b32 v255, 2, v1
    v_and_b32 v255, 4, v255
    v_and_b32 v253, 7, v1
    v_xor_b32 v255, v255, v253
    v_lshlrev_b32 v255, 4, v255
    v_lshl_add_u32 v253, v254, 10, v255
    v_lshrrev_b32 v255, 5, v1
    v_bfe_u32 v237, v1, 2, 2
    v_lshl_add_u32 v238, v255, 2, v237
    v_lshlrev_b32 v238, 7, v238
    v_lshrrev_b32 v237, 1, v237
    s_and_b32 s9, s11, 1
    v_xor_b32 v237, s9, v237
    v_lshl_add_u32 v238, v237, 6, v238
    v_bfe_u32 v237, v1, 4, 1
    v_lshl_add_u32 v238, v237, 5, v238
    v_and_b32 v237, 3, v1
    v_lshl_add_u32 v238, v237, 3, v238
    s_lshr_b32 s9, s11, 1
    s_lshl_b32 s9, s9, 15
    v_add_u32 v238, s9, v238
    s_mov_b32 s14, 0
    s_lshl_b32 s96, s11, 14              ; L*16 rows*1024
    s_lshl_b32 s9, s63, 8
    s_add_u32 s96, s96, s9
    """)
    srd(a, 92, 12, 512 * 512 * 2)
    if STAMP:
        for i in range(1, 22): a(f"s_mov_b32 s{70+i}, 0")

def wo_item(a, vm, n, blk=None):
    if blk is None: blk = n
    a(f"""
    s_add_u32 m0, s97, {blk*8192}
    s_add_u32 s9, s96, {((n >> 3)*256 + (n & 3)*64)*1024 + ((n >> 2) & 1)*128}
    buffer_load_dwordx4 v253, s[92:95], s9 offen lds
    s_add_u32 m0, s97, {blk*8192 + 1024}
    s_add_u32 s9, s9, 8192
    buffer_load_dwordx4 v253, s[92:95], s9 offen lds
    """)
    vm.issue(f"wo{n}", 2)

def wo_frag_reads(a, vaddr):
    for j in range(16):
        for h2 in range(2):
            a(f"ds_read_b64_tr_b16 {vr(128+4*j+2*h2,2)}, v{vaddr} offset:{2048*j + 1024*h2}")

def wloc(u):
    if u == 23: return Q7BLK * 8192
    if u < 16 or u >= 20: return RING + (u % 4) * 8192
    return (12 + u - 16) * 8192

def phi_list(src, dst, tmp, packed=True):
    fronts, backs = [], []
    for p in range(8):
        r = src + 2 * p
        t = tmp + 2 * (p % 4)
        if packed:
            fronts.append([f"v_pk_fma_f32 {vr(t,2)}, {vr(r,2)}, s[56:57], v[18:19]"])
            add = [f"v_pk_add_f32 {vr(r,2)}, {vr(r,2)}, s[58:59]"]
        else:
            fronts.append([f"v_fma_f32 v{t}, v{r}, s56, v18", f"v_fma_f32 v{t+1}, v{r+1}, s56, v18"])
            add = [f"v_add_f32 v{r}, s58, v{r}", f"v_add_f32 v{r+1}, s58, v{r+1}"]
        backs.append(([f"v_exp_f32_e64 v{t}, v{t} clamp", f"v_exp_f32_e64 v{t+1}, v{t+1} clamp"],
                      [f"v_max_f32 v{r}, v{r}, v{t}", f"v_max_f32 v{r+1}, v{r+1}, v{t+1}"],
                      add,
                      [f"v_cvt_pk_bf16_f32 v{dst+p}, v{r}, v{r+1}"]))
    out = []
    for step in range(8 + 4):
        if step < 8: out += fronts[step]
        for stage in range(4):
            p = step - 1 - stage
            if 0 <= p < 8: out += backs[p][stage]
    return out

def phi_consts(a):
    a(f"""
    s_mov_b32 s56, {f32(LOG2E)}
    s_mov_b32 s57, {f32(LOG2E)}
    s_mov_b32 s58, {f32(1e-6)}
    s_mov_b32 s59, {f32(1e-6)}
    v_mov_b32 v18, {f32(-LOG2E)}
    v_mov_b32 v19, {f32(-LOG2E)}
    """)

class GemmDma:
    def __init__(self, a): self.a = a; self.vm = VM(a)
    def st_of(self, i):
        self.a(f"""
        s_add_u32 s53, s49, {i}
        s_and_b32 s53, s53, 7
        """)
    def x_item(self, x):
        i, half = x >> 1, x & 1
        self.st_of(i)
        self.a(f"""
        s_lshl_b32 s54, s53, 7
        s_add_u32 s54, s54, s50
        s_add_u32 m0, s97, {x*8192}
        s_add_u32 s54, s54, {half*65536}
        buffer_load_dwordx4 v2, s[36:39], s54 offen lds
        s_add_u32 m0, s97, {x*8192 + 1024}
        s_add_u32 s54, s54, 8192
        buffer_load_dwordx4 v3, s[36:39], s54 offen lds
        """)
        self.vm.issue(f"x{x}", 2)
    def w_item(self, u):
        if u < 16:
            self.st_of(u >> 1)
            base, extra = "s51", (u & 1) * 32 * 3072
        else:
            self.st_of(u - 16)
            base, extra = "s52", 0
        self.a(f"""
        s_mul_i32 s55, s53, {64*3072}
        s_add_u32 s55, s55, {base}
        s_add_u32 m0, s97, {wloc(u)}
        s_add_u32 s55, s55, {extra}
        buffer_load_dwordx4 v252, s[40:43], s55 offen lds
        s_add_u32 m0, s97, {wloc(u) + 1024}
        s_add_u32 s55, s55, {8*3072}
        buffer_load_dwordx4 v252, s[40:43], s55 offen lds
        """)
        self.vm.issue(f"w{u}", 2)

GB = {}
def gemm_first(a):
    ROT = {0: "", 1: "s_add_u32 s49, s49, s45", 2: "s_lshr_b32 s9, s45, 1\n    s_xor_b32 s9, s9, s45\n    s_and_b32 s9, s9, 1\n    s_add_u32 s49, s49, s9", 3: "s_mov_b32 s49, 0"}[ROTM]
    a(f"""
    s_lshr_b32 s47, s45, 1
    s_lshl_b32 s47, s47, 2
    s_lshr_b32 s3, s46, 2
    s_add_u32 s47, s47, s3
    s_and_b32 s48, s45, 1
    s_lshl_b32 s48, s48, 2
    s_and_b32 s8, s46, 3
    s_add_u32 s48, s48, s8
    s_add_u32 s49, s3, s8
    s_lshl_b32 s49, s49, 1
    {ROT}
    s_and_b32 s49, s49, 7
    v_lshrrev_b32 v10, 2, v1
    v_and_b32 v10, 4, v10
    v_xor_b32 v10, v10, v11
    v_lshlrev_b32 v10, 4, v10
    v_mul_u32_u24 v252, 3072, v254
    v_add_u32 v252, v252, v10
    s_lshl_b32 s9, s48, 7
    s_mul_i32 s52, s11, {16*3072}
    s_add_u32 s52, s52, s9
    s_cmp_lt_u32 s44, 4
    s_cbranch_scc1 L_gA
    v_lshrrev_b32 v10, 4, v1
    v_xor_b32 v10, v10, v11
    v_lshlrev_b32 v10, 4, v10
    v_lshl_add_u32 v2, v254, 10, v10
    v_xor_b32 v3, 64, v2
    s_lshl_b32 s50, s47, 17
    s_lshl_b32 s10, s11, 14
    s_add_u32 s50, s50, s10
    s_lshr_b32 s10, s11, 1
    s_add_u32 s10, s10, 1
    s_lshl_b32 s51, s10, 10
    s_add_u32 s51, s51, s9
    s_and_b32 s10, s11, 1
    s_mul_i32 s10, s10, {16*3072}
    s_add_u32 s51, s51, s10
    s_mov_b32 s38, {2 << 20}
    s_mov_b32 s39, 0x00020000
    s_mov_b32 s42, {512 * 1536 * 2}
    s_mov_b32 s43, 0x00020000
    s_waitcnt lgkmcnt(0)
    s_mov_b32 s36, s4
    s_and_b32 s37, s5, 0xffff
    s_mov_b32 s40, s6
    s_and_b32 s41, s7, 0xffff
    """)
    D = GemmDma(a)
    GB["D"] = D
    D.x_item(0); D.x_item(1); D.w_item(0); D.w_item(1); D.w_item(16)

steps = []
for u in range(16): steps += [(u, 0, 2), (u, 1, 2)]
for u in range(16, 24): steps += [(u, k, 4) for k in range(4)]

def frag_addrs(a):
    a(f"""
    v_and_b32 v20, 31, v1
    v_lshrrev_b32 v21, 5, v1
    v_bfe_u32 v22, v1, 1, 3
    v_xor_b32 v22, v22, v21
    s_and_b32 s9, s44, 1
    s_lshl_b32 s9, s9, 13
    v_lshlrev_b32 v20, 7, v20
    v_add_u32 v20, s9, v20
    """)
    for ks in range(4):
        a(f"""
        v_xor_b32 v23, {2*ks}, v22
        v_lshl_add_u32 v{4+ks}, v23, 4, v20
        v_add_u32 v{8+ks}, 0x10000, v{4+ks}
        """)
    a(f"""
    s_lshr_b32 s9, s11, 1            ; hp
    v_bfe_u32 v20, v1, 2, 2          ; r
    v_lshl_add_u32 v22, v21, 3, v20  ; 8g + r
    v_lshlrev_b32 v22, 7, v22
    v_lshrrev_b32 v20, 1, v20
    v_xor_b32 v20, s9, v20
    v_lshl_add_u32 v22, v20, 6, v22
    v_bfe_u32 v20, v1, 4, 1
    v_lshl_add_u32 v22, v20, 5, v22
    v_and_b32 v20, 3, v1
    v_lshl_add_u32 v22, v20, 3, v22
    v_add_u32 v12, {RING}, v22
    v_mov_b32 v201, v22
    v_add_u32 v200, 0x10000, v22
    s_lshl_b32 s9, s47, 2
    s_and_b32 s10, s44, 1
    s_lshl_b32 s10, s10, 1
    s_add_u32 s9, s9, s10
    s_lshl_b32 s9, s9, 5
    s_lshl_b32 s10, s48, 2
    s_add_u32 s9, s9, s10
    s_and_b32 s10, s44, 2
    s_add_u32 s9, s9, s10
    s_lshl_b32 s9, s9, 10
    v_lshlrev_b32 v17, 4, v1
    v_add_u32 v15, s9, v17
    v_add_u32 v16, 0x8000, v15
    """)

def reads(a, si):
    u, ks, n = steps[si]
    fs = 24 + 16 * (si & 1)
    slot = u % 4
    if u < 16: i, k4 = u >> 1, 2 * (u & 1) + ks
    else: i, k4 = u - 16, ks
    xr = (4 if i < 4 else 8) + k4
    xo = (i & 3) * 16384
    wr, wo = (200, wloc(u) - 65536 + ks * 2048) if 16 <= u < 20 else (12, wloc(u) - RING + ks * 2048)
    if u == 23: wr, wo = 201, wloc(u) + ks * 2048
    a(f"ds_read_b128 {vr(fs,4)}, v{xr} offset:{xo}")
    a(f"ds_read_b64_tr_b16 {vr(fs+8,2)}, v{wr} offset:{wo}")
    a(f"ds_read_b64_tr_b16 {vr(fs+10,2)}, v{wr} offset:{wo + 512}")
    a(f"ds_read_b128 {vr(fs+4,4)}, v{xr} offset:{xo + 4096}")
    if u < 16:
        a(f"ds_read_b64_tr_b16 {vr(fs+12,2)}, v12 offset:{wo + 4096}")
        a(f"ds_read_b64_tr_b16 {vr(fs+14,2)}, v12 offset:{wo + 4096 + 512}")
        return 6
    return 4

def mfmas(a, si):
    u, ks, n = steps[si]
    fs = 24 + 16 * (si & 1)
    if u < 16:
        for (acc, xa, wb) in ((64, fs, fs+8), (96, fs+4, fs+8), (80, fs, fs+12), (112, fs+4, fs+12)):
            c = ("1.0" if acc in (64, 96) else "0") if si == 0 else vr(acc, 16)
            a(f"v_mfma_f32_32x32x16_bf16 {vr(acc,16)}, {vr(xa,4)}, {vr(wb,4)}, {c}")
    else:
        for (acc, xa, wb) in ((128, fs, fs+8), (144, fs+4, fs+8)):
            c = "1.0" if si == 32 else vr(acc, 16)
            a(f"v_mfma_f32_32x32x16_bf16 {vr(acc,16)}, {vr(wb,4)}, {vr(xa,4)}, {c}")

def need(u):
    if u < 16: return [f"x{2*(u>>1)}", f"x{2*(u>>1)+1}", f"w{u}"]
    return [f"w{u}"]

def gen_gemm_B(a):
    D = GB["D"]; vm = D.vm
    if STAMP: common_late(a)
    frag_addrs(a)
    for x in range(2, XLA): D.x_item(x)
    if LA == 3: D.w_item(2)
    stamp(a, 1)
    def wq_regs(m):
        for ks in range(4):
            for h in range(2):
                a(f"ds_read_b64_tr_b16 {vr(64+16*m+4*ks+2*h,2)}, v200 offset:{wloc(16+m) - 65536 + ks*2048 + 512*h}")
    def xq_reads(q, slot):
        fs = 24 + 8 * slot
        a(f"ds_read_b128 {vr(fs,4)}, v{4 + (q & 3)} offset:{(q >> 2)*16384}")
        a(f"ds_read_b128 {vr(fs+4,4)}, v{4 + (q & 3)} offset:{(q >> 2)*16384 + 4096}")
    def q_mfmas(q, slot):
        fs = 24 + 8 * slot
        for acc, xa in ((128, fs), (144, fs + 4)):
            c = "1.0" if q == 0 else vr(acc, 16)
            a(f"v_mfma_f32_32x32x16_bf16 {vr(acc,16)}, {vr(64+4*q,4)}, {vr(xa,4)}, {c}")
    prev = []
    a(f"s_setprio {PRIO_B1}")
    for j in range(16):
        nd = need(j)
        if j in (1, 3, 5, 7): nd = nd + [f"w{16 + j//2}"]
        vm.wait(nd, "lgkmcnt(0)")
        a("s_barrier")
        if j in (0, 4, 8, 12): stamp(a)
        cur = [(q, (2 * j + i) % 4) for i, q in enumerate(THIN.get(j, []))]
        if j in (1, 3, 5, 7): wq_regs(j // 2)
        for q, sl in cur: xq_reads(q, sl)
        if MF_FIRST:
            for q, sl in prev: q_mfmas(q, sl)
        if XFIRST and XLA + j < 16: D.x_item(XLA + j)
        if j + LA < 16: D.w_item(j + LA)
        if not XFIRST and XLA + j < 16: D.x_item(XLA + j)
        if j in (0, 2, 4): D.w_item(17 + j // 2)
        if j == 9:
            if not STAMP: common_late(a)
            phi_consts(a)
        if j == 12:
            D.w_item(23)
            a("""
            v_and_b32 v202, 7, v1
            v_lshlrev_b32 v202, 2, v202
            global_load_dword v203, v202, s[32:33] sc1
            """)
            vm.issue("gate")
        if j >= 13: D.w_item(20 + j - 13)
        if j == 15: wo_item(a, vm, 0)
        if not MF_FIRST:
            for q, sl in prev: q_mfmas(q, sl)
        prev = cur
    done = sum(len(v) for v in THIN.values())
    a(f"s_setprio {PRIO_B}")
    vm.wait(["w20", "w21", "w22", "w23"], "lgkmcnt(0)")
    a("s_barrier")
    stamp(a)
    assert not prev and done >= 8
    lg = LG(a)
    Q = list(range(done, 32))
    def p2reads(n):
        q = Q[n]
        fs = P2F[n % len(P2F)]
        i, ks = q >> 2, q & 3
        u = 16 + i
        xr, xo = (4 if i < 4 else 8) + ks, (i & 3) * 16384
        lg.rd(f"ds_read_b128 {vr(fs,4)}, v{xr} offset:{xo}")
        if q >= 16:
            wr, wo = (201, wloc(u) + ks * 2048) if u == 23 else (12, wloc(u) - RING + ks * 2048)
            lg.rd(f"ds_read_b64_tr_b16 {vr(fs+8,2)}, v{wr} offset:{wo}")
            lg.rd(f"ds_read_b64_tr_b16 {vr(fs+10,2)}, v{wr} offset:{wo + 512}")
        lg.rd(f"ds_read_b128 {vr(fs+4,4)}, v{xr} offset:{xo + 4096}")
    for n in range(P2D): p2reads(n)
    for n, q in enumerate(Q):
        fs = P2F[n % len(P2F)]
        wf = fs + 8 if q >= 16 else 64 + 4 * q
        lg.need(f"v_mfma_f32_32x32x16_bf16 {vr(128,16)}, {vr(wf,4)}, {vr(fs,4)}, {vr(128,16)}")
        lg.need(f"v_mfma_f32_32x32x16_bf16 {vr(144,16)}, {vr(wf,4)}, {vr(fs+4,4)}, {vr(144,16)}")
        if n + P2D < len(Q): p2reads(n + P2D)
    stamp(a)
    for ins in phi_list(128, 160, 56): a(ins)
    a("""
    global_store_dwordx4 v15, v[160:163], s[34:35] sc1
    global_store_dwordx4 v15, v[164:167], s[34:35] offset:1024 sc1
    """)
    for ins in phi_list(144, 168, 56): a(ins)
    a("""
    global_store_dwordx4 v16, v[168:171], s[34:35] sc1
    global_store_dwordx4 v16, v[172:175], s[34:35] offset:1024 sc1
    s_setprio 0
    v_add_u32 v238, 0x10000, v238
    s_lshl_b32 s9, s47, 1
    s_and_b32 s10, s44, 1
    s_add_u32 s9, s9, s10
    s_mul_i32 s9, s9, %d
    s_lshl_b32 s10, s48, 7
    s_add_u32 s9, s9, s10
    s_and_b32 s10, s44, 2
    s_lshl_b32 s10, s10, 1
    s_add_u32 s9, s9, s10
    s_add_u32 s15, s9, %d
    """ % (ZS, WS_Z + 1536))
    stamp(a)
    gate_verify(a, 203, 20, 21)
    a("s_mov_b32 s14, 1")
    if SUBR:
        a("s_call_b64 s[100:101], L_setup")
        a("s_nop 0")
    a("s_waitcnt vmcnt(0)")
    store_flag(a, "s15", 22, 23)
    stamp(a)
    if BFLAG1: a("s_barrier")
    for n in WO_LATE[NLA:]: wo_item(a, vm, n)
    a("s_branch L_p2w")

JX = 19

def gen_gemm_A(a):
    a("L_gA:")
    a("s_nop 4")
    D = GemmDma(a); vm = D.vm
    frag_addrs(a)
    phi_consts(a)
    a(f"""
    v_and_b32 v20, 16, v1
    v_cmp_eq_u32 s[60:61], 0, v20
    v_mov_b32 v196, 0x3f803f80
    v_mov_b32 v197, 0x3f803f80
    v_mov_b32 v198, 0x3f803f80
    v_mov_b32 v199, 0x3f803f80
    s_lshl_b32 s9, s48, 2
    s_add_u32 s9, s9, s11
    s_mul_i32 s98, s9, {ZS}
    s_add_u32 s98, s98, {WS_Z}
    v_lshlrev_b32 v13, 2, v1
    v_add_u32 v13, s98, v13
    s_lshl_b32 s9, s48, 2
    s_lshr_b32 s10, s47, 2
    s_add_u32 s9, s9, s10
    s_mul_i32 s99, s9, {ZS}
    s_and_b32 s10, s47, 3
    s_lshl_b32 s10, s10, 7
    s_add_u32 s99, s99, s10
    s_lshl_b32 s10, s11, 2
    s_add_u32 s99, s99, s10
    s_add_u32 s99, s99, {WS_Z + 3328}
    s_waitcnt lgkmcnt(0)
    """)
    common_late(a)
    a("""
    v_and_b32 v202, 7, v1
    v_lshlrev_b32 v202, 2, v202
    ; hand-over flag of head L: block 5, region L, in a row the head does not use (even: row 24, odd: row 4)
    s_and_b32 s9, s44, 1
    s_mul_i32 s9, s9, %d
    s_sub_u32 s9, %d, s9
    s_add_u32 s9, s9, s97
    v_mov_b32 v204, s9                   ; inbox
    s_xor_b32 s10, s44, 1
    s_and_b32 s9, s10, 1
    s_mul_i32 s9, s9, %d
    s_sub_u32 s9, %d, s9
    s_lshl_b32 s10, s10, 11
    s_add_u32 s9, s9, s10
    v_mov_b32 v206, s9                   ; partner's inbox
    v_mov_b32 v205, 0
    v_mov_b32 v207, 1
    """ % (20*64, XB*8192 + 24*64, 20*64, XB*8192 + 24*64))
    stamp(a, 1)
    US = (24, 128)
    def ureads(u):
        L = []
        i = u >> 1
        for ks in range(2):
            fs = US[u & 1] + 16 * ks
            xr, xo = (4 if i < 4 else 8) + 2 * (u & 1) + ks, (i & 3) * 16384
            wo = wloc(u) - RING + ks * 2048
            L += [f"ds_read_b128 {vr(fs,4)}, v{xr} offset:{xo}",
                  f"ds_read_b64_tr_b16 {vr(fs+8,2)}, v12 offset:{wo}",
                  f"ds_read_b64_tr_b16 {vr(fs+10,2)}, v12 offset:{wo + 512}",
                  f"ds_read_b128 {vr(fs+4,4)}, v{xr} offset:{xo + 4096}",
                  f"ds_read_b64_tr_b16 {vr(fs+12,2)}, v12 offset:{wo + 4096}",
                  f"ds_read_b64_tr_b16 {vr(fs+14,2)}, v12 offset:{wo + 4096 + 512}"]
        return L
    def umfmas(u):
        M = []
        for ks in range(2):
            fs = US[u & 1] + 16 * ks
            for (acc, xa, wb) in ((64, fs, fs+8), (96, fs+4, fs+8), (80, fs, fs+12), (112, fs+4, fs+12)):
                c = ("1.0" if acc in (64, 96) else "0") if (u == 0 and ks == 0) else vr(acc, 16)
                M.append(f"v_mfma_f32_32x32x16_bf16 {vr(acc,16)}, {vr(xa,4)}, {vr(wb,4)}, {c}")
        return M
    a("s_barrier")
    stamp(a)
    for x in ureads(0): a(x)
    for u in range(16):
        a("s_waitcnt lgkmcnt(0)")
        if DYNP and u == 15: a("s_setprio 3")
        a("s_barrier")
        if u in (3, 7, 11, 15): stamp(a)
        R = ureads(u + 1) if u < 15 else []
        if u == 11: R.append("global_load_dword v203, v202, s[32:33] sc1")
        if u == 12: R.append("ds_write_b32 v204, v205")
        k = 0
        for i, m in enumerate(umfmas(u)):
            a(m)
            tgt = min(len(R), RPM * (i + 1))
            while k < tgt: a(R[k]); k += 1
    a(f"s_setprio {PRIO_A}")
    a(f"""
    v_and_b32 v25, 31, v1
    v_lshlrev_b32 v25, 6, v25
    v_lshrrev_b32 v24, 5, v1
    v_lshl_add_u32 v25, v24, 5, v25
    s_and_b32 s9, s44, 1
    s_lshl_b32 s10, s9, 13
    s_mul_i32 s9, s9, {15*64}
    s_add_u32 s9, s9, s97
    s_add_u32 s9, s9, {XB*8192}
    v_lshlrev_b32 v24, 2, v1
    v_add_u32 v24, s9, v24
    s_and_b32 s9, s44, 2
    s_lshl_b32 s9, s9, 11
    s_add_u32 s9, s9, s10
    s_add_u32 s9, s9, {XB*8192}
    v_add_u32 v25, s9, v25
    """)
    P = phi_list(64, 160, 56, APK) + phi_list(96, 168, 56, APK)
    Vc = [f"v_cvt_pk_bf16_f32 v{176+p}, v{80+2*p}, v{81+2*p}" for p in range(8)] + [f"v_cvt_pk_bf16_f32 v{184+p}, v{112+2*p}, v{113+2*p}" for p in range(8)]
    E = []
    pendm = []
    for ins in P:
        E.append(ins)
        if pendm:
            pendm[0][0] -= 1
            if pendm[0][0] <= 0: E.append(pendm.pop(0)[1])
        if ins.startswith("v_cvt_pk"):
            dreg = int(ins.split()[1][1:-1])
            k = dreg - 160
            E.append(Vc[k])
            if k % 4 == 3:
                j = k // 4
                c1 = "0" if j == 0 else vr(128, 16)
                c2 = "0" if j == 0 else vr(144, 16)
                pendm.append([2, f"v_mfma_f32_32x32x16_bf16 {vr(128,16)}, {vr(160+4*j,4)}, {vr(176+4*j,4)}, {c1}"])
                pendm.append([5, f"v_mfma_f32_32x32x16_bf16 {vr(144,16)}, {vr(160+4*j,4)}, v[196:199], {c2}"])
    E += [m[1] for m in pendm]
    E += [f"v_cndmask_b32 v{32+r}, v{144+r}, v{128+r}, s[60:61]" for r in range(8)]
    E += [f"v_cndmask_b32 v{40+r}, v{136+r}, v{152+r}, s[60:61]" for r in range(8)]
    for ins in E:
        if DYNP and "mfma" in ins:
            a("s_setprio 3"); a(ins); a("s_setprio 0")
        else: a(ins)
    lw0, lw1 = label("w"), label("w")
    a(f"""
    s_mov_b32 exec_lo, 0x1ffff
    s_mov_b32 exec_hi, 0x1ffff
    ds_write_b128 v25, v[32:35]
    ds_write_b128 v25, v[36:39] offset:16
    s_mov_b32 exec_lo, 0xffff8000
    s_mov_b32 exec_hi, 0xffff8000
    ds_write_b128 v25, v[40:43] offset:2048
    ds_write_b128 v25, v[44:47] offset:2064
    s_mov_b64 exec, -1
    ds_write_b32 v206, v207
    s_waitcnt vmcnt(0)
    """)
    gate_verify(a, 203, 20, 21)
    stamp(a)
    a(f"""
    s_mov_b32 s10, 0
    {lw0}:
    ds_read_b32 v20, v204
    s_add_u32 s10, s10, 1
    s_waitcnt lgkmcnt(0)
    v_cmp_eq_u32 vcc, 0, v20
    s_cmp_gt_u32 s10, {SPIN_MAX*16}
    s_cbranch_scc1 {lw1}
    s_cbranch_vccnz {lw0}
    {lw1}:
    """)
    for k in range(5):
        a(f"ds_read_b32 v{32+k}, v24 offset:{256*k}")
        a(f"ds_read_b32 v{40+k}, v24 offset:{8192 + 256*k}")
    for k in range(5):
        a(f"s_waitcnt lgkmcnt({8-2*k})")
        a(f"v_add_f32 v{32+k}, v{32+k}, v{40+k}")
        if k == 4: a("s_mov_b64 exec, 0xffff")
        a(f"global_atomic_add_f32 v13, v{32+k}, s[34:35] offset:{256*k} sc1")
    a("s_mov_b64 exec, -1")
    a("s_setprio 0")
    vm.issue("at", 5)
    stamp(a)
    for n in (XB, XB + 1): wo_item(a, vm, n)
    a("s_mov_b32 s14, 1")
    if SUBR:
        a("s_call_b64 s[100:101], L_setup")
        a("s_nop 0")
    vm.wait("at")
    store_flag(a, "s99", 22, 23)
    stamp(a)
    a("s_barrier")
    for n in WO_LATE[:NLA]: wo_item(a, vm, n)
    a("s_branch L_p2w")

UVP = 2064
UVH = 29 * UVP
KCL = 172 * 16
KCP = 4 * KCL + 64
XP0 = 143360
XPC = 5120
XPP = 1280
KC0 = XP0 - 4 * KCP
S_LEN = 2112
S0 = KC0 - 8 * S_LEN
assert KC0 + 3 * KCP >= 58 * UVP and S0 >= 81920 and XP0 + 4 * XPC == LDS
CNT_LDS = KC0 + 3 * KCP + 4 * KCL
assert KC0 % 16 == 0 and S0 % 16 == 0 and UVH + 2048 < 65536

def ssm_first(a):
    a(f"""
    s_lshl_b32 s47, s45, 4
    s_add_u32 s47, s47, s46           ; cg
    s_lshr_b32 s49, s44, 2
    s_lshl_b32 s9, s47, 2
    s_add_u32 s9, s9, s11
    s_lshl_b32 s9, s9, 8
    s_lshl_b32 s10, s49, 7
    s_add_u32 s9, s9, s10
    v_lshlrev_b32 v2, 1, v1
    v_add_u32 v2, s9, v2
    s_lshl_b32 s8, s47, 3
    s_lshr_b32 s9, s46, 1
    s_add_u32 s9, s9, s44
    s_and_b32 s9, s9, 7               ; bhi
    v_bfe_u32 v10, v1, 1, 3
    s_lshl_b32 s10, s9, 3
    v_add_u32 v250, s10, v10          ; beta
    v_lshrrev_b32 v251, 4, v1         ; G
    v_and_b32 v12, 1, v1              ; half
    v_lshlrev_b32 v13, 3, v250
    v_lshl_add_u32 v13, v251, 1, v13
    v_add_u32 v13, v13, v12           ; q
    v_lshlrev_b32 v13, 12, v13
    v_add_u32 v249, s8, v13
    s_xor_b32 s15, s49, 1
    s_lshl_b32 s15, s15, 7
    s_add_u32 s15, s15, s47
    s_waitcnt lgkmcnt(0)
    global_load_ushort v4, v2, s[16:17]
    global_load_ushort v5, v2, s[18:19]
    global_load_ushort v6, v2, s[20:21]
    global_load_ushort v7, v2, s[22:23]
    s_load_dwordx2 s[52:53], s[24:25], s8
    s_load_dwordx2 s[54:55], s[26:27], s8
    s_cmp_lt_u32 s15, 8
    s_cbranch_scc1 L_zero
    L_zero_back:
    s_barrier
    global_load_dwordx2 v[240:241], v249, s[4:5]
    global_load_dwordx2 v[242:243], v249, s[4:5] offset:1024
    s_branch L_ssm
    """)

def gen_ssm(a):
    vm = VM(a)
    a(f"""
    L_zero:
    s_lshl_b32 s9, s47, 2
    s_add_u32 s9, s9, s11
    s_mul_i32 s9, s9, {ZS}
    s_add_u32 s9, s9, {WS_Z}
    v_lshlrev_b32 v20, 4, v1
    v_add_u32 v20, s9, v20
    v_mov_b32 v24, 0
    v_mov_b32 v25, 0
    v_mov_b32 v26, 0
    v_mov_b32 v27, 0
    global_store_dwordx4 v20, v[24:27], s[34:35] sc0 sc1
    global_store_dwordx4 v20, v[24:27], s[34:35] offset:1024 sc0 sc1
    global_store_dwordx4 v20, v[24:27], s[34:35] offset:2048 sc0 sc1
    global_store_dwordx4 v20, v[24:27], s[34:35] offset:{ZS-1024} sc0 sc1
    s_branch L_zero_back
    """)
    a("L_ssm:")
    a("s_nop 4")
    common_late(a)
    a(f"""
    s_mul_i32 s50, s11, {KCL}
    s_add_u32 s50, s50, {KC0}
    s_lshl_b32 s51, s11, 9
    v_mul_u32_u24 v14, {XPP}, v251
    v_lshl_add_u32 v14, v250, 4, v14
    v_lshl_add_u32 v14, v12, 3, v14
    v_add_u32 v248, {XP0 + 256}, v14
    s_lshl_b32 s9, s49, 8
    s_add_u32 s98, s9, s51
    s_add_u32 s99, s98, {UVH}
    s_lshl_b32 s9, s47, 2
    s_add_u32 s9, s9, s11
    s_lshl_b32 s48, s9, 12            ; channel*4096
    s_waitcnt lgkmcnt(0)
    s_cmp_ge_u32 s11, 2
    s_cselect_b32 s9, s53, s52
    s_cselect_b32 s60, s55, s54
    s_lshl_b32 s10, s9, 16
    s_and_b32 s9, s9, 0xffff0000
    s_lshl_b32 s61, s60, 16
    s_and_b32 s60, s60, 0xffff0000
    s_bitcmp1_b32 s11, 0
    s_cselect_b32 s9, s9, s10
    s_cselect_b32 s60, s60, s61
    s_mov_b32 s56, {f32(L2E_HI)}
    s_mov_b32 s57, {f32(L2E_LO)}
    v_mov_b32 v8, s9
    """)
    def exp_bf16(x, t0, t1):
        a(f"""
        v_mul_f32 v{t0}, s56, v{x}
        v_rndne_f32 v{t1}, v{t0}
        v_sub_f32 v{t0}, v{t0}, v{t1}
        v_fma_f32 v{t0}, v{x}, s57, v{t0}
        v_exp_f32 v{t0}, v{t0}
        v_cvt_i32_f32 v{t1}, v{t1}
        v_ldexp_f32 v{t0}, v{t0}, v{t1}
        v_cvt_pk_bf16_f32 v{t0}, v{t0}, v{t0}
        v_lshlrev_b32 v{x}, 16, v{t0}
        """)
    exp_bf16(8, 10, 11)
    a("""
    s_mov_b32 m0, s98
    v_mov_b32 v10, 0x3f80
    ds_write_addtid_b32 v10
    """)
    stamp(a, 1)
    a("s_waitcnt vmcnt(2)")
    stamp(a)
    lf = label("f")
    a(f"""
    s_cmp_ge_u32 s15, 8
    s_cbranch_scc1 {lf}
    s_lshl_b32 s9, s47, 2
    s_add_u32 s9, s9, s11
    v_mov_b32 v20, s9
    v_mov_b32 v21, 1
    s_mov_b64 exec, 1
    global_store_byte v20, v21, s[32:33] sc0 sc1
    s_mov_b64 exec, -1
    {lf}:
    """)
    a("""
    v_lshlrev_b32 v4, 16, v4
    v_lshlrev_b32 v5, 16, v5
    v_lshlrev_b32 v6, 16, v6
    v_lshlrev_b32 v7, 16, v7
    """)
    exp_bf16(4, 10, 11)
    a(f"""
    v_mul_f32 v4, v4, v8
    v_mul_f32 v4, {f32(-LOG2E)}, v4
    v_mul_f32 v5, v5, v8
    v_mul_f32 v5, 0.15915494, v5
    v_add_f32 v9, v8, v8
    v_mul_f32 v30, v6, v9
    v_mul_f32_e64 v31, v7, -v9
    """)
    V = lambda b: 64 + 2 * b
    U = lambda c: 30 + 2 * c
    pw = [(8, V(1)), (1, 20), (256, 24), (512, 26), (1024, 28)]
    for i, (p, d) in enumerate(pw):
        t = 10 + 2 * i
        if p == 1:
            a(f"v_exp_f32 v{t}, v4")
            a(f"v_fract_f32 v{t+1}, v5")
        else:
            a(f"v_mul_f32 v{t}, {f32(float(p))}, v4")
            a(f"v_mul_f32 v{t+1}, {f32(float(p))}, v5")
            a(f"v_exp_f32 v{t}, v{t}")
            a(f"v_fract_f32 v{t+1}, v{t+1}")
    for i, (p, d) in enumerate(pw):
        t = 10 + 2 * i
        a(f"v_cos_f32 v{d}, v{t+1}")
        a(f"v_sin_f32 v{d+1}, v{t+1}")
    for i, (p, d) in enumerate(pw):
        t = 10 + 2 * i
        a(f"v_mul_f32 v{d}, v{d}, v{t}")
        a(f"v_mul_f32 v{d+1}, v{d+1}, v{t}")
    def cm1(d, x, y):
        return f"v_pk_mul_f32 {vr(d,2)}, {vr(x,2)}, {vr(y,2)} op_sel:[0,0] op_sel_hi:[1,0]"
    def cm2(d, x, y, conj):
        neg = "neg_hi:[1,0,0]" if conj else "neg_lo:[1,0,0]"
        return f"v_pk_fma_f32 {vr(d,2)}, {vr(x,2)}, {vr(y,2)}, {vr(d,2)} op_sel:[1,1,0] op_sel_hi:[0,1,1] {neg}"
    pk = [0]; cur = [0]
    def puts(lst):
        W = []
        for src, rows in lst:
            if not rows: continue
            t = 10 + (pk[0] % 10); pk[0] += 1
            a(f"v_cvt_pk_bf16_f32 v{t}, v{src}, v{src+1}")
            W += [(r, t) for r in rows]
        W.sort(key=lambda x: (x[0] >= 29) != bool(cur[0]))
        for r, t in W:
            h = int(r >= 29)
            if h != cur[0]:
                a(f"s_mov_b32 m0, s{98+h}"); cur[0] = h
            a(f"ds_write_addtid_b32 v{t} offset:{(r - 29*h)*UVP}")
    def batch(items):
        for (d, x, y, cj, rows) in items: a(cm1(d, x, y))
        for (d, x, y, cj, rows) in items: a(cm2(d, x, y, cj))
        puts([(d, rows) for (d, x, y, cj, rows) in items])
    urow = {0: [32+0], 1: [32+1], 2: [32+2], 3: [32+3], 4: [32+8], 5: [32+9], 6: [32+10], 7: [32+11], 8: [],
            256: [32+4, 32+5], 258: [32+6], 260: [32+7, 32+12, 32+13], 262: [32+14], 264: [32+15],
            512: [32+16], 516: [32+17], 520: [32+18], 1032: [32+19],
            768: [32+20], 772: [32+21], 776: [32+22], 1544: [32+23], 1288: [32+24], 1800: [32+25]}
    puts([(V(1), [1]), (30, urow[0])])
    H = {}
    nxt = [128]
    def home(e):
        H[e] = nxt[0]; nxt[0] += 2; return H[e]
    batch([(V(2), V(1), V(1), False, [2]), (U(1), U(0), 20, True, urow[1]), (home(256), U(0), 24, True, urow[256]), (home(512), U(0), 26, True, urow[512])])
    batch([(V(3), V(2), V(1), False, [3]), (V(4), V(2), V(2), False, [4]), (U(2), U(1), 20, True, urow[2]), (home(768), H[256], 26, True, urow[768])])
    extra = {
        0: [(U(3), U(2), 20, True, urow[3]), (lambda: (home(258), U(2), 24, True, urow[258]))],
        1: [(U(4), U(3), 20, True, urow[4])],
        2: [(U(5), U(4), 20, True, urow[5]), (lambda: (home(260), U(4), 24, True, urow[260])), (lambda: (home(516), U(4), 26, True, urow[516]))],
        3: [(U(6), U(5), 20, True, urow[6]), (lambda: (home(772), H[260], 26, True, urow[772]))],
        4: [(U(7), U(6), 20, True, urow[7]), (lambda: (home(262), U(6), 24, True, urow[262]))],
        5: [(U(8), U(7), 20, True, urow[8])],
        6: [(lambda: (home(264), U(8), 24, True, urow[264])), (lambda: (home(520), U(8), 26, True, urow[520])), (lambda: (home(1032), U(8), 28, True, urow[1032]))],
    }
    for step in range(7):
        items = []
        for j in range(4):
            b = 5 + 4 * step + j
            if b <= 31:
                items.append((V(b), V(b - 4), V(4), False, [b]))
        for e in extra[step]:
            items.append(e() if callable(e) else e)
        batch(items)
        if step == GSTEP[0]: a("global_load_dwordx2 v[244:245], v249, s[4:5] offset:2048")
        if step == GSTEP[1]: a("global_load_dwordx2 v[246:247], v249, s[4:5] offset:3072")
    batch([(home(776), H[264], 26, True, urow[776]), (home(1288), H[264], 28, True, urow[1288]), (home(1544), H[520], 28, True, urow[1544])])
    batch([(home(1800), H[776], 28, True, urow[1800])])
    stamp(a)
    BASE = 3 * KCP
    a(f"""
    v_lshlrev_b32 v6, 4, v1
    v_add_u32 v6, s50, v6
    s_cmp_lg_u32 s49, 0
    s_cbranch_scc1 L_s_h1
    v_and_b32 v10, 31, v1
    v_min_u32 v11, 25, v10
    v_add_u32 v11, 32, v11
    v_mul_u32_u24 v10, {UVP}, v10
    v_mul_u32_u24 v11, {UVP}, v11
    v_lshrrev_b32 v12, 5, v1
    v_lshlrev_b32 v12, 4, v12
    v_add_u32 v12, s51, v12
    v_add_u32 v4, v10, v12
    v_add_u32 v5, v11, v12
    v_lshlrev_b32 v10, 4, v1
    s_add_u32 s9, s50, {BASE + 71*16}
    v_sub_u32 v10, s9, v10
    v_and_b32 v11, 3, v1
    v_lshlrev_b32 v11, 7, v11
    v_bfe_u32 v12, v1, 2, 3
    v_lshlrev_b32 v12, 1, v12
    v_sub_u32 v11, v11, v12
    v_lshrrev_b32 v12, 5, v1
    v_lshlrev_b32 v12, 5, v12
    v_sub_u32 v11, v11, v12
    s_add_u32 s9, s50, {BASE + 140*16}
    v_add_u32 v11, s9, v11
    v_mov_b32 v13, s60
    v_cmp_eq_u32 vcc, 0, v1
    v_cndmask_b32 v13, 0, v13, vcc
    v_mov_b32 v12, s50
    s_waitcnt lgkmcnt(0)
    s_barrier
    """)
    stamp(a)
    def kr(ks):
        a(f"ds_read_b128 {vr(64+8*(ks%8),4)}, v5 offset:{32*ks}")
        a(f"ds_read_b128 {vr(68+8*(ks%8),4)}, v4 offset:{32*ks}")
    for ks in range(7): kr(ks)
    for ks in range(16):
        if ks + 7 < 16:
            kr(ks + 7)
            a("s_waitcnt lgkmcnt(14)")
        else:
            a(f"s_waitcnt lgkmcnt({2*(15-ks)})")
        c = "0" if ks == 0 else vr(32, 16)
        a(f"v_mfma_f32_32x32x16_bf16 {vr(32,16)}, {vr(64+8*(ks%8),4)}, {vr(68+8*(ks%8),4)}, {c}")
    stamp(a)
    a("v_add_f32 v32, v32, v13")
    for k in range(4):
        a(f"v_cvt_pk_bf16_f32 v{52+k}, v{32+7-2*k}, v{32+6-2*k}")
    a(f"""
    v_cvt_pk_bf16_f32 v56, v42, v42
    v_cvt_pk_bf16_f32 v57, v41, v41
    v_cvt_pk_bf16_f32 v58, v41, v40
    v_cvt_pk_bf16_f32 v59, v40, v40
    v_cvt_pk_bf16_f32 v60, v43, v44
    ds_write_b128 v10, v[52:55] offset:1024
    ds_write_b128 v10, v[56:59]
    ds_write_b16 v11, v60 offset:62
    ds_write_b16_d16_hi v11, v60 offset:46
    v_mov_b32 v60, 0
    v_and_b32 v61, 0xffff0000, v56
    v_mov_b32 v62, v56
    v_mov_b32 v63, v56
    s_mov_b32 exec_lo, 0
    s_mov_b32 exec_hi, 0x80000000
    ds_write_b128 v12, v[60:63] offset:{BASE + 7*16}
    s_mov_b64 exec, -1
    s_branch L_s_h2
    L_s_h1:
    s_waitcnt lgkmcnt(0)
    s_barrier
    v_mov_b32 v16, 0
    v_mov_b32 v17, 0
    v_mov_b32 v18, 0
    v_mov_b32 v19, 0
    v_subrev_u32 v10, 11, v1
    v_lshrrev_b32 v11, 2, v10
    v_and_b32 v10, 3, v10
    v_lshl_add_u32 v10, v11, 3, v10
    v_add_u32 v10, 144, v10
    v_add_u32 v11, 129, v1
    v_cmp_gt_u32 vcc, 11, v1
    v_cndmask_b32 v10, v10, v11, vcc
    v_cmp_gt_u32 vcc, 7, v1
    v_cndmask_b32 v10, v10, v1, vcc
    v_lshlrev_b32 v10, 4, v10
    v_add_u32 v10, s50, v10
    s_mov_b64 exec, 0x7ffffff
    ds_write_b128 v10, v[16:19] offset:{BASE}
    s_mov_b64 exec, -1
    v_mul_u32_u24 v14, {XPP}, v251
    v_and_b32 v15, 15, v1
    v_lshl_add_u32 v14, v15, 4, v14
    s_mul_i32 s9, s11, {XPC}
    s_add_u32 s9, s9, {XP0}
    v_add_u32 v14, s9, v14
    ds_write_b128 v14, v[16:19]
    L_s_h2:
    s_waitcnt lgkmcnt(0)
    s_barrier
    """)
    stamp(a, 6)
    def copy_pass(D, T, off, masked):
        for k in range(4): a(f"v_mov_b32 v{T+k}, v{D+1+k}")
        for k in range(4): a(f"v_alignbit_b32 v{T+4+k}, v{D+k+1}, v{D+k}, 16")
        for k in range(4): a(f"v_alignbit_b32 v{T+8+k}, v{D+k+2}, v{D+k+1}, 16")
        if masked: a("s_mov_b32 exec_hi, 0xfff")
        a(f"ds_write_b128 v7, {vr(T,4)} offset:{1*KCP + off}")
        a(f"ds_write_b128 v7, {vr(T+4,4)} offset:{2*KCP + off}")
        a(f"ds_write_b128 v7, {vr(T+8,4)} offset:{0*KCP + off}")
        if masked: a("s_mov_b64 exec, -1")
    a(f"""
    s_lshl_b32 s9, s49, 10
    v_add_u32 v7, s9, v6
    ds_read_b128 v[64:67], v7 offset:{BASE}
    ds_read_b64 v[68:69], v7 offset:{BASE + 16}
    ds_read_b128 v[72:75], v7 offset:{BASE + 1024}
    ds_read_b64 v[76:77], v7 offset:{BASE + 1024 + 16}
    s_mov_b32 s9, 0x05040100
    s_mov_b32 s10, 0x07060302
    s_waitcnt lgkmcnt(2)
    """)
    copy_pass(64, 96, 0, False)
    a("""
    s_cmp_eq_u32 s49, 0
    s_cbranch_scc1 L_s_c1
    s_waitcnt lgkmcnt(3)
    """)
    copy_pass(72, 112, 1024, True)
    stamp(a, 7)
    a("""
    s_waitcnt vmcnt(0)
    s_branch L_s_c2
    L_s_c1:
    """)
    stamp(a, 7)
    a("""
    s_waitcnt vmcnt(0)
    L_s_c2:
    """)
    stamp(a)
    a(f"""
    v_perm_b32 v16, v242, v240, s9
    v_perm_b32 v17, v246, v244, s9
    v_perm_b32 v18, v242, v240, s10
    v_perm_b32 v19, v246, v244, s10
    v_perm_b32 v20, v243, v241, s9
    v_perm_b32 v21, v247, v245, s9
    v_perm_b32 v22, v243, v241, s10
    v_perm_b32 v23, v247, v245, s10
    ds_write_b64 v248, v[16:17]
    ds_write_b64 v248, v[18:19] offset:{XPC}
    ds_write_b64 v248, v[20:21] offset:{2*XPC}
    ds_write_b64 v248, v[22:23] offset:{3*XPC}
    s_cmp_lg_u32 s49, 0
    s_cbranch_scc1 L_s_help
    """)
    a(f"""
    v_and_b32 v10, 3, v1
    v_mul_u32_u24 v10, {KCP}, v10
    v_bfe_u32 v12, v1, 2, 2               ; i2
    v_lshlrev_b32 v13, 1, v251
    v_sub_u32 v13, v13, v12
    v_lshlrev_b32 v13, 3, v13
    v_add3_u32 v10, v10, v13, s50
    v_add_u32 v4, 24, v10
    s_mul_i32 s9, s11, {XPC}
    s_add_u32 s9, s9, {XP0}
    v_mul_u32_u24 v13, {XPP}, v251
    v_and_b32 v14, 15, v1
    v_lshl_add_u32 v13, v14, 4, v13
    v_add_u32 v7, s9, v13
    v_lshlrev_b32 v15, 6, v14
    v_and_b32 v9, 1, v251
    v_lshl_add_u32 v15, v9, 5, v15
    v_lshrrev_b32 v9, 1, v251
    v_lshl_add_u32 v15, v9, 4, v15
    s_add_u32 s10, s48, {WS_BG}
    v_add_u32 v9, s10, v15
    v_lshl_add_u32 v13, v251, 3, v12
    v_lshlrev_b32 v13, 6, v13
    v_and_b32 v14, 3, v1
    v_lshl_add_u32 v13, v14, 3, v13
    s_mul_i32 s9, s11, {2*S_LEN}
    s_add_u32 s9, s9, {S0}
    v_add_u32 v8, s9, v13                 ; vS
    s_setprio {PRIO_C}
    s_waitcnt lgkmcnt(0)
    s_barrier
    """)
    stamp(a)
    ACC = lambda rho, ct: 32 + 4 * (4 * rho + ct)
    fB = lambda s: 64 + 32 * (s % 2)
    fA = lambda s, lv, rho: (64 + 32 * (s % 2) + 16 + 8 * lv + 4 * rho) if lv < 2 else (128 + 8 * s + 4 * rho)
    def levels(s): return [0, 1, 2] if s <= 1 else [0, 1]
    def rhos(sig): return [0] if sig == 33 else [0, 1]
    def creads(s):
        L = []
        def A(lv, rho):
            dl = 2 * (s + 16 * lv) + rho
            return [f"ds_read_b64 {vr(fA(s,lv,rho)+2*h,2)}, v4 offset:{2144 - 32*dl + 8*h}" for h in range(2)]
        L += A(0, 0)
        for k in range(4):
            L.append(f"ds_read_b128 {vr(fB(s)+4*k,4)}, v7 offset:{(16*k + 16 - s)*16}")
        L += A(0, 1) + A(1, 0) + A(1, 1)
        if 2 in levels(s):
            for rho in rhos(s + 32): L += A(2, rho)
        return L
    FRb, SRb = 144, 176
    FR = []
    for tau in range(4):
        for ti_, v0 in ((0, 32), (1, 0)):
            for h in range(2):
                FR.append(f"ds_read_b64 {vr(FRb+8*tau+4*ti_+2*h,2)}, v4 offset:{(140+8*tau)*16 + v0 + 8*h}")
    SR = []
    for tau in range(4):
        for rho in range(2):
            for h in range(2):
                off = (tau & 1) * S_LEN + 256 * h + 32 * rho + 64 - 16 * (tau + 1)
                SR.append(f"ds_read_b64_tr_b16 {vr(SRb+8*tau+4*rho+2*h,2)}, v8 offset:{off}")
    lg = LG(a)
    for x in creads(0): lg.rd(x)
    started = set()
    for s in range(16):
        nxtL = creads(s + 1) if s + 1 < 16 else []
        if 4 <= s < 12: nxtL = nxtL + FR[2*(s-4):2*(s-4)+2]
        if s == SBAR: a("s_barrier")
        if s >= 12: nxtL = nxtL + SR[4*(s-12):4*(s-12)+4]
        M = []
        for lv in levels(s):
            for rho in rhos(s + 16 * lv):
                for k in range(4 - lv):
                    ct = k + lv
                    c = vr(ACC(rho, ct), 4) if (rho, ct) in started else "0"
                    started.add((rho, ct))
                    M.append(f"v_mfma_f32_16x16x32_bf16 {vr(ACC(rho,ct),4)}, {vr(fA(s,lv,rho),4)}, {vr(fB(s)+4*k,4)}, {c}")
        k = 0
        nM = max(1, len(M) - CTAIL)
        for i, mf in enumerate(M):
            lg.need(mf)
            tgt = min(len(nxtL), (len(nxtL) * (i + 1) + nM - 1) // nM)
            while k < tgt: lg.rd(nxtL[k]); k += 1
        if s == 7:
            stamp(a)
            if STAMP: lg.sync()
    for tau in range(4):
        for rho in range(2):
            for ct in (2, 3):
                lg.need(f"v_mfma_f32_16x16x32_bf16 {vr(ACC(rho,ct),4)}, {vr(SRb+8*tau+4*rho,4)}, {vr(FRb+8*tau+4*(ct-2),4)}, {vr(ACC(rho,ct),4)}")
    stamp(a)
    for ct in range(4):
        t = 64 + 4 * ct
        for rho in range(2):
            A = ACC(rho, ct)
            a(f"v_cvt_pk_bf16_f32 v{t+2*rho}, v{A}, v{A+1}")
            a(f"v_cvt_pk_bf16_f32 v{t+2*rho+1}, v{A+2}, v{A+3}")
    for ct in range(4):
        t = 64 + 4 * ct
        a(f"v_permlane16_swap_b32 v{t}, v{t+2}")
        a(f"v_permlane16_swap_b32 v{t+1}, v{t+3}")
        a(f"global_store_dwordx4 v9, {vr(t,4)}, s[34:35] offset:{1024*ct} sc1")
    a(f"""
    s_setprio 0
    s_lshr_b32 s9, s47, 2
    s_mul_i32 s9, s9, {ZS}
    s_and_b32 s10, s47, 3
    s_lshl_b32 s10, s10, 7
    s_add_u32 s9, s9, s10
    s_lshl_b32 s10, s11, 2
    s_add_u32 s9, s9, s10
    s_add_u32 s15, s9, {WS_Z + 2816}
    """)
    if SUBR:
        a("s_call_b64 s[100:101], L_setup")
        a("s_nop 0")
    a("s_waitcnt vmcnt(0)")
    store_flag(a, "s15", 22, 23)
    stamp(a)
    a("s_barrier")
    a("s_branch L_p2")
    a("L_s_help:")
    a(f"""
    s_waitcnt lgkmcnt(0)
    s_barrier
    """)
    stamp(a, 9)
    a("""
    v_and_b32 v202, 7, v1
    v_lshlrev_b32 v202, 2, v202
    global_load_dword v203, v202, s[32:33] sc1
    """)
    vm.issue("gate")
    a("""
    v_lshlrev_b32 v20, 4, v1
    v_add_u32 v21, s48, v20
    global_load_dwordx4 v[204:207], v20, s[28:29]
    global_load_dwordx4 v[208:211], v21, s[4:5]
    global_load_dwordx4 v[212:215], v21, s[4:5] offset:1024
    global_load_dwordx4 v[216:219], v21, s[4:5] offset:2048
    global_load_dwordx4 v[220:223], v21, s[4:5] offset:3072
    """)
    vm.issue("gx", 5)
    for n in range(4): wo_item(a, vm, n)
    for rnd in range(2):
        a(f"""
        s_mul_i32 s9, s11, {XPC}
        s_add_u32 s9, s9, {XP0}
        """)
        for j in range(3):
            a(f"""
            v_add_u32 v13, {62 + 64*rnd + j}, v1
            v_and_b32 v14, 3, v13
            v_mul_u32_u24 v14, {XPP}, v14
            v_lshrrev_b32 v13, 2, v13
            v_lshl_add_u32 v14, v13, 4, v14
            v_add_u32 v{24+j}, s9, v14
            """)
        a(f"""
        ds_read_b64 v[128:129], v24 offset:8
        ds_read_b128 v[130:133], v25
        ds_read_b64 v[134:135], v26
        s_mul_i32 s9, s11, {2*S_LEN}
        s_add_u32 s9, s9, {S0}
        v_lshlrev_b32 v27, 4, v1
        v_add_u32 v27, s9, v27
        s_waitcnt lgkmcnt(0)
        """)
        for k in range(8):
            a(f"v_lshlrev_b32 v{136+2*k}, 16, v{128+k}")
            a(f"v_and_b32 v{137+2*k}, 0xffff0000, v{128+k}")
        X = lambda i: 136 + 4 + i
        a(f"""
        v_add_f32 v152, v{X(-3)}, v{X(-2)}
        v_add_f32 v153, v{X(-1)}, v{X(0)}
        v_add_f32 v154, v{X(1)}, v{X(2)}
        v_add_f32 v152, v152, v{X(3)}
        v_add_f32 v153, v153, v154
        v_add_f32 v152, v152, v153
        """)
        for e in range(1, 8): a(f"v_sub_f32 v{160+e}, v{X(e+3)}, v{X(e-4)}")
        for e in range(8): a(f"v_add_f32 v{168+e}, v{X(e-4)}, v{X(e+4)}")
        for e in range(1, 8): a(f"v_add_f32 v{152+e}, v{152+e-1}, v{160+e}")
        for e in range(8): a(f"v_add_f32 v{168+e}, v{168+e}, v{152+e}")
        for k in range(4):
            a(f"v_cvt_pk_bf16_f32 v{176+k}, v{152+2*k}, v{153+2*k}")
            a(f"v_cvt_pk_bf16_f32 v{180+k}, v{168+2*k}, v{169+2*k}")
        a(f"""
        ds_write_b128 v27, v[176:179] offset:{48 + 1024*rnd}
        ds_write_b128 v27, v[180:183] offset:{S_LEN + 48 + 1024*rnd}
        """)
        for n in range(4 + 3*rnd, 7 + 3*rnd): wo_item(a, vm, n)
    a(f"""
    v_mov_b32 v16, 0
    v_mov_b32 v17, 0
    v_mov_b32 v18, 0
    v_mov_b32 v19, 0
    s_mov_b64 exec, 7
    ds_write_b128 v27, v[16:19]
    ds_write_b128 v27, v[16:19] offset:{S_LEN}
    s_mov_b64 exec, -1
    """)
    vm.wait("gate")
    gate_verify(a, 203, 20, 21)
    a("s_waitcnt lgkmcnt(0)")
    stamp(a)
    a("s_barrier")
    vm.wait("gx")
    for t in range(4): a(f"v_mov_b32 v{224+t}, 0")
    for jj in range(4):
        for t in range(4):
            a(f"v_dot2_f32_bf16 v{224+t}, v{208+4*t+jj}, v{204+jj}, v{224+t}")
    for mod in ("row_shr:1", "row_shr:2", "row_shr:4", "row_shr:8"):
        for t in range(4):
            a(f"v_add_f32_dpp v{224+t}, v{224+t}, v{224+t} {mod} row_mask:0xf bank_mask:0xf bound_ctrl:0")
    for mod in ("row_bcast:15 row_mask:0xa", "row_bcast:31 row_mask:0xc"):
        for t in range(4):
            a(f"v_add_f32_dpp v{224+t}, v{224+t}, v{224+t} {mod} bank_mask:0xf")
    for t in range(4): a(f"v_mul_f32 v{224+t}, {f32(-LOG2E)}, v{224+t}")
    for t in range(4): a(f"v_exp_f32 v{224+t}, v{224+t}")
    for t in range(4): a(f"v_add_f32 v{224+t}, 1.0, v{224+t}")
    for t in range(4): a(f"v_rcp_f32 v{224+t}, v{224+t}")
    for t in range(4): a(f"v_or_b32 v{224+t}, 1, v{224+t}")
    a(f"""
    s_lshr_b32 s9, s47, 2
    s_mul_i32 s9, s9, {ZS}
    s_lshr_b32 s10, s48, 8
    s_and_b32 s10, s10, 0xf0
    s_add_u32 s9, s9, s10
    s_add_u32 s9, s9, {WS_Z + 2560}
    v_mov_b32 v20, s9
    s_mov_b32 exec_lo, 0
    s_mov_b32 exec_hi, 0x80000000
    global_store_dwordx4 v20, v[224:227], s[34:35] sc1
    s_mov_b64 exec, -1
    """)
    a("v_add_u32 v238, 0x10000, v238")
    stamp(a)
    if SUBR:
        a("s_call_b64 s[100:101], L_setup")
        a("s_nop 0")
    a("s_barrier")
    for n in range(10, 16): wo_item(a, vm, n)
    a("s_branch L_p2w")

AUX = 131072
KVI = 16384
def gen_phase2(a):
    a("L_setup:" if SUBR else "L_p2w:\nL_p2:")
    a(f"""
    v_lshlrev_b32 v3, 4, v1
    s_and_b32 s47, s44, 3                    ; cb
    s_lshr_b32 s48, s44, 2                   ; kh
    v_lshrrev_b32 v12, 5, v1                 ; g
    v_and_b32 v11, 31, v1
    s_mul_i32 s9, s44, {4*ZS}
    s_add_u32 s9, s9, {WS_Z}
    v_add_u32 v4, s9, v3
    v_add_u32 v2, {2*ZS}, v4
    v_bfe_u32 v13, v1, 2, 2
    v_mul_u32_u24 v7, {ZS}, v13
    v_and_b32 v14, 3, v1
    v_lshl_add_u32 v7, v14, 4, v7
    v_add_u32 v7, s9, v7
    v_mul_u32_u24 v8, 576, v13
    v_lshl_add_u32 v8, v14, 3, v8
    s_lshl_b32 s50, s44, 12
    s_add_u32 s50, s50, {AUX}
    v_add_u32 v8, s50, v8
    v_lshlrev_b32 v17, 3, v1
    v_add_u32 v17, s50, v17
    v_min_u32 v13, 16, v11
    v_lshlrev_b32 v13, 5, v13
    v_lshl_add_u32 v13, v12, 4, v13
    v_add_u32 v18, s50, v13
    v_max_u32 v13, 15, v11
    v_subrev_u32 v13, 15, v13
    v_lshlrev_b32 v13, 5, v13
    v_lshl_add_u32 v13, v12, 4, v13
    v_add_u32 v19, s50, v13
    v_lshrrev_b32 v13, 4, v1
    v_mul_u32_u24 v13, {ZS}, v13
    v_bfe_u32 v14, v1, 2, 2
    v_lshl_add_u32 v13, v14, 7, v13
    v_and_b32 v14, 3, v1
    v_lshl_add_u32 v13, v14, 2, v13
    v_add_u32 v13, s9, v13
    v_add_u32 v9, 3328, v13
    s_lshr_b32 s9, s62, 1
    s_mul_i32 s9, s9, {ZS}
    s_lshl_b32 s10, s44, 7
    s_add_u32 s9, s9, s10
    s_add_u32 s9, s9, {WS_Z + 1536}
    v_and_b32 v14, 1, v1
    v_lshlrev_b32 v14, 2, v14
    v_add_u32 v10, s9, v14
    s_lshl_b32 s9, s63, 3
    s_lshl_b32 s10, s47, 1
    s_add_u32 s9, s9, s10
    s_add_u32 s9, s9, s48
    s_mul_i32 s9, s9, {ZS}
    s_add_u32 s9, s9, {WS_Z + 2816}
    v_bfe_u32 v13, v1, 2, 2
    v_lshlrev_b32 v13, 7, v13
    v_and_b32 v14, 3, v1
    v_lshl_add_u32 v13, v14, 2, v13
    v_add_u32 v105, s9, v13
    s_lshl_b32 s9, s62, 5
    s_lshl_b32 s10, s44, 2
    s_add_u32 s9, s9, s10
    s_lshl_b32 s9, s9, 10
    v_add_u32 v5, s9, v3
    s_lshl_b32 s9, s63, 7
    s_lshl_b32 s10, s47, 5
    s_add_u32 s9, s9, s10
    s_lshl_b32 s10, s48, 4
    s_add_u32 s9, s9, s10
    s_lshl_b32 s9, s9, 12
    s_lshl_b32 s10, s62, 6
    s_add_u32 s9, s9, s10
    s_add_u32 s49, s9, {WS_BG}
    v_lshlrev_b32 v13, 14, v12
    v_lshl_add_u32 v6, v11, 1, v13           ; b voffset
    s_lshr_b32 s9, s62, 1
    s_mul_i32 s9, s9, {ZS}
    s_and_b32 s10, s62, 1
    s_lshl_b32 s10, s10, 7
    s_add_u32 s9, s9, s10
    s_add_u32 s9, s9, {WS_Z + 2560}
    v_lshlrev_b32 v13, 2, v11
    v_add_u32 v15, s9, v13                   ; g
    s_lshl_b32 s9, s62, 15
    s_lshl_b32 s10, s63, 8
    s_add_u32 s9, s9, s10
    s_lshl_b32 s10, s47, 6
    s_add_u32 s9, s9, s10
    s_lshl_b32 s10, s48, 5
    s_add_u32 s9, s9, s10
    v_lshlrev_b32 v13, 10, v11
    v_lshl_add_u32 v13, v12, 4, v13
    v_add_u32 v16, s9, v13                   ; out
    s_lshl_b32 s9, s44, 12
    s_add_u32 s9, s9, {AUX}
    v_add_u32 v13, s9, v3
    s_lshl_b32 s9, s48, 14
    s_add_u32 s9, s9, {AUX}
    v_add_u32 v14, s9, v3
    s_mov_b32 s54, {f32(1e-6)}
    """)
    srd(a, 36, 34, 6 << 20)
    if SUBR:
        a("""
        s_setpc_b64 s[100:101]
        L_p2w:
        s_waitcnt vmcnt(0)
        L_p2:
        """)
    else: a("s_waitcnt vmcnt(0)")
    stamp(a, 13)
    def bloads():
        for k in range(8):
            a(f"s_add_u32 s9, s49, {(8*(k>>2) + (k&3))*4096}")
            a(f"buffer_load_ushort v{96+k}, v6, s[36:39], s9 offen sc1")
    lp, lq, l1, l2 = label("pp"), label("pq"), label("p1"), label("p2")
    KVGATE = f"s_bitcmp1_b32 s55, 0\n    s_cbranch_scc1 {l2}b" if KVAFTER else ""
    if POLLAFTER: a("s_barrier")
    a("""
    global_load_dword v21, v9, s[34:35] sc1
    global_load_dword v20, v10, s[34:35] sc1
    """)
    if not POLLAFTER: a("s_barrier")
    wo_frag_reads(a, 238)
    stamp(a)
    a(f"""
    s_mov_b32 s10, 0
    s_mov_b32 s55, 3
    {lp}:
    s_waitcnt vmcnt(0)
    s_add_u32 s10, s10, 1
    s_cmp_gt_u32 s10, {SPIN_MAX}
    s_cselect_b64 s[58:59], 0, -1
    s_bitcmp0_b32 s55, 1
    s_cbranch_scc1 {l1}
    v_cmp_ne_u32 vcc, 1, v21
    s_and_b64 vcc, vcc, s[58:59]
    s_cbranch_scc1 {l1}
    s_and_b32 s55, s55, 1
    global_load_dwordx4 v[32:35], v4, s[34:35] sc1
    global_load_dwordx4 v[36:39], v4, s[34:35] offset:{ZS} sc1
    global_load_dwordx4 v[40:43], v2, s[34:35] sc1
    global_load_dwordx4 v[44:47], v2, s[34:35] offset:{ZS} sc1
    global_load_dwordx4 v[48:51], v7, s[34:35] offset:1024 sc1
    {l1}:
    s_bitcmp0_b32 s55, 0
    s_cbranch_scc1 {l2}
    v_cmp_ne_u32 vcc, 1, v20
    s_and_b64 vcc, vcc, s[58:59]
    s_cbranch_scc1 {l2}
    s_and_b32 s55, s55, 2
    """)
    for j in range(4):
        a(f"global_load_dwordx4 {vr(80+4*j,4)}, v5, s[34:35] offset:{1024*j} sc1")
    a(f"""
    {l2}:
    s_cmp_eq_u32 s55, 0
    s_cbranch_scc1 {lq}
    s_sleep {PSLEEP}
    s_bitcmp0_b32 s55, 1
    s_cbranch_scc1 {l2}b
    {KVGATE}
    v_cmp_ne_u32 vcc, 1, v21
    s_mov_b64 exec, vcc
    global_load_dword v21, v9, s[34:35] sc1
    s_mov_b64 exec, -1
    {l2}b:
    s_bitcmp0_b32 s55, 0
    s_cbranch_scc1 {lp}
    global_load_dword v20, v10, s[34:35] sc1
    s_branch {lp}
    {lq}:
    global_load_dword v106, v105, s[34:35] sc1
    global_load_dword v104, v15, s[34:35] sc1
    """)
    stamp(a)
    a("s_waitcnt vmcnt(2)")
    for i in range(5):
        a(f"v_cvt_pk_bf16_f32 v{52+2*i}, v{32+4*i}, v{33+4*i}")
        a(f"v_cvt_pk_bf16_f32 v{53+2*i}, v{34+4*i}, v{35+4*i}")
        if i < 4: a(f"ds_write_b64 v17, {vr(52+2*i,2)} offset:{576*i}")
        else: a(f"ds_write_b64 v8, {vr(52+2*i,2)} offset:512")
    a("s_waitcnt lgkmcnt(0)")
    for j in range(4):
        a(f"ds_read_b128 {vr(64+4*j,4)}, v{18 + (j & 1)} offset:{576*j}")
    stamp(a)
    if STAMP: a("s_mov_b32 s90, s10")
    for j in range(4):
        a(f"s_waitcnt lgkmcnt({3-j})")
        a(f"v_mfma_f32_32x32x16_bf16 {vr(192+16*j,16)}, {vr(64+4*j,4)}, {vr(80+4*j,4)}, 0")
    def bcheck():
        lb0, lb1 = label("b"), label("b")
        a(f"""
        s_mov_b32 s10, 0
        s_waitcnt vmcnt(0)
        {lb0}:
        v_min_u32 v20, v104, v106
        v_cmp_eq_u32 vcc, 0, v20
        s_add_u32 s10, s10, 1
        s_cmp_gt_u32 s10, {SPIN_MAX}
        s_cbranch_scc1 {lb1}
        s_cbranch_vccz {lb1}
        s_sleep {PSLEEP}
        global_load_dword v106, v105, s[34:35] sc1
        global_load_dword v104, v15, s[34:35] sc1
        s_waitcnt vmcnt(0)
        s_branch {lb0}
        {lb1}:
        """)
        bloads()
    if BEARLY: bcheck()
    for j in range(4):
        D = 192 + 16 * j
        N, Dn = (D, D + 8) if j % 2 == 0 else (D + 8, D)
        a(f"v_add_f32 v{Dn}, s54, v{Dn}")
        a(f"v_rcp_f32 v{Dn}, v{Dn}")
        for r in range(8): a(f"v_mul_f32 v{N+r}, v{Dn}, v{N+r}")
        for k in range(4): a(f"v_cvt_pk_bf16_f32 v{Dn+4+k}, v{N+2*k}, v{N+2*k+1}")
        a(f"ds_write_b128 v13, {vr(Dn+4,4)} offset:{1024*j}")
    a("""
    s_waitcnt lgkmcnt(0)
    s_barrier
    """)
    stamp(a)
    def s2reads(j):
        a(f"ds_read_b128 {vr(192+4*j,4)}, v14 offset:{1024*j}")
    for j in range(8): s2reads(j)
    if not BEARLY: bcheck()
    for j in range(16):
        a(f"s_waitcnt lgkmcnt({min(7, 15-j)})")
        c = "0" if j == 0 else vr(32, 16)
        a(f"v_mfma_f32_32x32x16_bf16 {vr(32,16)}, {vr(128+4*j,4)}, {vr(192+4*j,4)}, {c}")
        if j + 8 < 16: s2reads(j + 8)
    stamp(a)
    le0, le1 = label("e"), label("e")
    a(f"""
    s_lshl_b32 s9, s44, 11
    v_add_u32 v13, s9, v3
    s_xor_b32 s9, s9, {4 << 11}
    v_add_u32 v14, s9, v3
    s_waitcnt vmcnt(0)
    """)
    for k in range(8):
        a(f"v_lshlrev_b32 v{72+k}, 16, v{96+k}")
    a(f"""
    s_cmp_eq_u32 s48, 0
    s_cbranch_scc1 {le0}
    ds_write_b128 v13, v[32:35]
    ds_write_b128 v13, v[36:39] offset:1024
    """)
    for r in range(8): a(f"v_mov_b32 v{32+r}, v{40+r}")
    a(f"""
    s_branch {le1}
    {le0}:
    ds_write_b128 v13, v[40:43]
    ds_write_b128 v13, v[44:47] offset:1024
    {le1}:
    """)
    for r in range(8): a(f"v_sub_f32 v{32+r}, v{32+r}, v{72+r}")
    a("""
    s_waitcnt lgkmcnt(0)
    s_barrier
    ds_read_b128 v[64:67], v14
    ds_read_b128 v[68:71], v14 offset:1024
    s_waitcnt lgkmcnt(0)
    """)
    for r in range(8): a(f"v_add_f32 v{32+r}, v{32+r}, v{64+r}")
    for r in range(8): a(f"v_fmac_f32 v{72+r}, v104, v{32+r}")
    for k in range(4): a(f"v_cvt_pk_bf16_f32 v{80+k}, v{72+2*k}, v{73+2*k}")
    a("""
    v_permlane32_swap_b32 v80, v82
    v_permlane32_swap_b32 v81, v83
    global_store_dwordx4 v16, v[80:83], s[30:31]
    """)
    stamp(a)
    stamp_end(a)

GSTEP = (1, 4)
PSLEEP = 4
NLA = 7
CNT1 = False
DYNP = True
BFLAG1 = True
WO_A1 = (0, 1)
WO_THR = None
PADN = 64
RBIT = 3
BEARLY = False
SUBR = True
ROTM = 0
KVAFTER = False
POLLAFTER = True
WO_A2 = (2, 3, 4, 5, 6)
PRIO_A = 0
PRIO_B = 1
PRIO_C = 2
WARM = 1
KVPOLL = 0xffff
QS = 1
MF_FIRST = False
RPM = 2
P2F = (24, 36, 64, 76)
P2D = 3
LA = 3
XLA = 4
XFIRST = True
PRIO_B1 = 0
THIN = {1: [0], 2: [1], 3: [2], 4: [3], 5: [4], 6: [5], 7: [6], 8: [7]}
Q7BLK = 1
XB = 2
WO_EARLY = (0, 4, 5, 6, 7)
WO_LATE = (1, 4, 5, 6, 7, 8, 9, 10, 11, 12, 13, 14, 15)
APK = False
WO_N1 = 8
SBAR = 11
SBAR2 = 12
ESPLIT = 0.7
CTAIL = 2

def kd(name, nv, ns):
    return f"""
.p2align 6
.amdhsa_kernel {name}
  .amdhsa_next_free_vgpr {nv}
  .amdhsa_next_free_sgpr {ns}
  .amdhsa_accum_offset {(nv + 3) // 4 * 4}
  .amdhsa_group_segment_fixed_size 0
  .amdhsa_kernarg_size 112
  .amdhsa_user_sgpr_count 2
  .amdhsa_user_sgpr_kernarg_segment_ptr 1
  .amdhsa_system_sgpr_workgroup_id_x 1
  .amdhsa_float_denorm_mode_32 3
.end_amdhsa_kernel
"""

def main(path):
    hdr = open("cdna_kernels/" + NAME + ".s.ref").read().split("; Override launch")[0]
    a = Asm()
    gen_k1(a)
    body = a.finalize()
    if WARM == 2:
        lines = body.split("\n")
        out_l, cnt, npad = [], 0, 0
        started = False
        for ln in lines:
            if ln.strip() == "L_gemm:": started = True
            st = ln.strip()
            is_ins = ln.startswith("    ") and st and not st.startswith((";", "."))
            if started and is_ins:
                cnt += 1
                if cnt >= PADN and npad < 64:
                    out_l.append(f"LPAD_{npad}:")
                    out_l.append("    s_cbranch_execz L_wret")
                    npad += 1; cnt = 0
            out_l.append(ln)
        disp = ["L_wdisp:"]
        for i in range(npad):
            disp.append(f"    s_cmp_eq_u32 s9, {i}")
            disp.append(f"    s_cbranch_scc1 LPAD_{i}")
        disp.append("    s_branch L_wret")
        body = "\n".join(out_l).replace("@WDISP@", "\n".join(disp))
        print("pads:", npad)
    out = hdr
    out += f"; @launch grid=(256,1,1) block=(512,1,1) lds={LDS}\n"
    out += """;
"""
    out += '.amdgcn_target "amdgcn-amd-amdhsa--gfx950"\n.text\n'
    out += body
    out += '.section .rodata,"a"\n' + kd(K1, 256, 102)
    open(path, "w").write(out)
    print("auto nop states:", a.auto_nop_states)

if __name__ == "__main__":
    args = []
    for x in sys.argv[1:]:
        if x == "--stamp": STAMP = True
        elif x == "--rt": STAMP = True; STI = "s_memrealtime"
        elif x.startswith("--") and "=" in x:
            k, v = x[2:].split("=")
            globals()[k] = eval(v)
        else: args.append(x)
    main(args[0] if args else "cdna_kernels/" + NAME + ".s")
```

```python
import sys, struct
from asmlib import Asm

def f32(x):
    return "0x%08x" % struct.unpack("<I", struct.pack("<f", x))[0]

NAME = "gated_mix__linear_attn_block__ssm_conv_s4d__prompt"
K1 = NAME + "_kernel"

WS_PQ = 4096
WS_BG = (2 << 20) + 8192
WS_Z = (4 << 20) + 65536
ZS = 3840
WS_ST = 6 << 20

LOG2E = 1.4426950408889634
L2E_HI = struct.unpack("<f", struct.pack("<I", 0x3FB8AA00))[0]
L2E_LO = LOG2E - L2E_HI
LDS = 163840
SPIN_MAX = 0x4000
OPT = {}

STAMP = False
STI = "s_memtime"
_st = {"n": 0}
LIGHT = False
def stamp(a, at=None):
    if not STAMP or LIGHT: return
    if at is not None: _st["n"] = at
    n = _st["n"]; _st["n"] += 1
    assert n < 21, n
    a(f"""
    {STI} s[66:67]
    s_waitcnt lgkmcnt(0)
    s_mov_b32 s{70+n}, s66
    """)
def stamp_end(a):
    if not STAMP: return
    a(f"""
    s_waitcnt vmcnt(0)
    {STI} s[66:67]
    s_memrealtime s[64:65]
    s_waitcnt lgkmcnt(0)
    s_mov_b32 s91, s66
    s_mov_b64 exec, 1
    s_lshl_b32 s9, s2, 3
    s_add_u32 s9, s9, s44
    s_lshl_b32 s9, s9, 7
    s_add_u32 s9, s9, {WS_ST}
    v_mov_b32 v10, s9
    """)
    for q in range(6):
        src = [70+4*q+i for i in range(4)]
        if q == 5: src = [90, 91, 68, 64]
        for i in range(4): a(f"v_mov_b32 v{12+i}, s{src[i]}")
        a(f"global_store_dwordx4 v10, v[12:15], s[34:35] offset:{16*q}")
        a("s_nop 1")

def vr(b, n):
    return f"v[{b}:{b+n-1}]" if n > 1 else f"v{b}"

def srd(a, d, base, nbytes):
    a(f"""
    s_mov_b32 s{d}, s{base}
    s_and_b32 s{d+1}, s{base+1}, 0xffff
    s_mov_b32 s{d+2}, {nbytes}
    s_mov_b32 s{d+3}, 0x00020000
    """)

_lbl = [0]
def label(p):
    _lbl[0] += 1
    return f"L{p}_{_lbl[0]}"

class VM:
    def __init__(self, a): self.a = a; self.ops = []
    def issue(self, tag, n=1): self.ops += [tag] * n
    def has(self, tags): return any(t in tags for t in self.ops)
    def wait(self, tags, extra=""):
        if isinstance(tags, str): tags = [tags]
        last = max(i for i, t in enumerate(self.ops) if t in tags)
        n = len(self.ops) - 1 - last
        assert n <= 63
        self.a(f"s_waitcnt vmcnt({n}) {extra}".strip())

class LG:
    def __init__(self, a): self.a = a; self.ops = []; self.done = 0
    def rd(self, ins):
        from asmlib import Ins
        self.a(ins); self.ops.append(Ins(ins).wr)
    def need(self, ins):
        from asmlib import Ins
        rd = Ins(ins).rd
        last = -1
        for i in range(self.done, len(self.ops)):
            if self.ops[i] & rd: last = i
        if last >= 0:
            n = min(15, len(self.ops) - 1 - last)
            self.a(f"s_waitcnt lgkmcnt({n})")
            self.done = len(self.ops) - n
        self.a(ins)
    def sync(self): self.done = len(self.ops)

def flags_check(a, vt0, vt1):
    l0, l1 = label("g"), label("g")
    a(f"""
    v_and_b32 v{vt0}, 7, v1
    v_lshlrev_b32 v{vt0}, 2, v{vt0}
    s_mov_b32 s10, 0
    s_mov_b32 s9, 0x01010101
    {l0}:
    global_load_dword v{vt1}, v{vt0}, s[32:33] sc1
    s_add_u32 s10, s10, 1
    s_waitcnt vmcnt(0)
    v_cmp_ne_u32 vcc, s9, v{vt1}
    s_cmp_gt_u32 s10, {SPIN_MAX}
    s_cbranch_scc1 {l1}
    s_cbranch_vccz {l1}
    s_sleep 8
    s_branch {l0}
    {l1}:
    """)

def gate_verify(a, vloaded, vt0, vt1):
    lg = label("gk")
    a(f"""
    s_mov_b32 s9, 0x01010101
    v_cmp_ne_u32 vcc, s9, v{vloaded}
    s_cbranch_vccz {lg}
    """)
    flags_check(a, vt0, vt1)
    a(f"{lg}:")

def store_flag(a, saddr, vt0, vt1):
    a(f"""
    v_mov_b32 v{vt0}, {saddr}
    v_mov_b32 v{vt1}, 1
    s_mov_b64 exec, 1
    global_store_dword v{vt0}, v{vt1}, s[34:35] sc1
    s_mov_b64 exec, -1
    """)

def poison_test(a, regs, vt):
    regs = list(regs)
    a(f"v_max3_u32 v{vt}, v{regs[0]}, v{regs[1]}, v{regs[2]}" if len(regs) >= 3 else f"v_max_u32 v{vt}, v{regs[0]}, v{regs[1]}")
    rest = regs[3:] if len(regs) >= 3 else []
    while len(rest) >= 2:
        a(f"v_max3_u32 v{vt}, v{vt}, v{rest[0]}, v{rest[1]}"); rest = rest[2:]
    if rest: a(f"v_max_u32 v{vt}, v{vt}, v{rest[0]}")
    a(f"v_cmp_eq_u32 vcc, -1, v{vt}")

RING = 131072

def gen_k1(a):
    SUBEXP = "s_lshr_b32 s46, s2, 4" if RBIT == 3 else "s_bfe_u32 s46, s2, 0x40003"
    a(f"""
    .globl {K1}
    .p2align 8
    .type {K1},@function
    {K1}:
    s_cmp_ge_u32 s2, 256
    s_cbranch_scc1 L_end
    s_load_dwordx4 s[4:7], s[0:1], 0
    s_load_dwordx16 s[16:31], s[0:1], 32
    s_load_dwordx4 s[32:35], s[0:1], 96
    s_load_dwordx2 s[12:13], s[0:1], 16
    """)
    if STAMP:
        a(f"""
        s_memrealtime s[68:69]
        {STI} s[70:71]
        """)
    a(f"""
    v_lshrrev_b32 v2, 6, v0
    v_and_b32 v1, 63, v0
    v_readfirstlane_b32 s44, v2
    s_and_b32 s45, s2, 7
    {SUBEXP}
    """)
    if WARM == 2:
        a(f"""
        s_lshr_b32 s9, s2, 3
        s_lshl_b32 s9, s9, 3
        s_add_u32 s9, s9, s44
        s_and_b32 s9, s9, 63
        s_mov_b64 exec, 0
        s_branch L_wdisp
        L_wret:
        s_mov_b64 exec, -1
        """)
    if WARM == 1:
        a(f"""
        s_getpc_b64 s[100:101]
        s_and_b32 s100, s100, 0xffffff00
        v_lshlrev_b32 v3, 4, v0
        s_and_b32 s9, s46, 3
        s_lshl_b32 s9, s9, 13
        v_add_u32 v3, s9, v3
        v_min_u32 v3, CODE_END - {K1} - 16, v3
        v_mov_b32 v5, s101
        v_add_co_u32 v4, vcc, s100, v3
        v_addc_co_u32 v5, vcc, 0, v5, vcc
        global_load_dwordx4 v[228:231], v[4:5], off
        """)
    a(f"""
    v_lshrrev_b32 v254, 3, v1
    v_and_b32 v11, 7, v1
    s_and_b32 s11, s44, 3
    s_lshl_b32 s97, s11, 11              ; L*2048
    s_bitcmp1_b32 s2, {RBIT}
    s_cbranch_scc0 L_gemm
    """)
    ssm_first(a)
    if WARM == 2: a.raw("@WDISP@")
    a("L_gemm:")
    gemm_first(a)
    gen_gemm_B(a)
    gen_gemm_A(a)
    gen_ssm(a)
    gen_phase2(a)
    a("""
    L_end:
    s_endpgm
    CODE_END:
    """)

def common_late(a):
    a(f"""
    s_and_b32 s63, s46, 3                ; cq
    s_lshr_b32 s62, s46, 2
    s_lshl_b32 s62, s62, 1
    s_bfe_u32 s9, s2, {0x10000 + RBIT}
    s_add_u32 s62, s62, s9
    s_lshl_b32 s9, s45, 3
    s_add_u32 s62, s62, s9               ; tt
    v_lshrrev_b32 v255, 2, v1
    v_and_b32 v255, 4, v255
    v_and_b32 v253, 7, v1
    v_xor_b32 v255, v255, v253
    v_lshlrev_b32 v255, 4, v255
    v_lshl_add_u32 v253, v254, 10, v255
    v_lshrrev_b32 v255, 5, v1
    v_bfe_u32 v237, v1, 2, 2
    v_lshl_add_u32 v238, v255, 2, v237
    v_lshlrev_b32 v238, 7, v238
    v_lshrrev_b32 v237, 1, v237
    s_and_b32 s9, s11, 1
    v_xor_b32 v237, s9, v237
    v_lshl_add_u32 v238, v237, 6, v238
    v_bfe_u32 v237, v1, 4, 1
    v_lshl_add_u32 v238, v237, 5, v238
    v_and_b32 v237, 3, v1
    v_lshl_add_u32 v238, v237, 3, v238
    s_lshr_b32 s9, s11, 1
    s_lshl_b32 s9, s9, 15
    v_add_u32 v238, s9, v238
    s_mov_b32 s14, 0
    s_lshl_b32 s96, s11, 14              ; L*16 rows*1024
    s_lshl_b32 s9, s63, 8
    s_add_u32 s96, s96, s9
    """)
    srd(a, 92, 12, 512 * 512 * 2)
    if STAMP:
        for i in range(1, 22): a(f"s_mov_b32 s{70+i}, 0")

def wo_item(a, vm, n, blk=None):
    if blk is None: blk = n
    a(f"""
    s_add_u32 m0, s97, {blk*8192}
    s_add_u32 s9, s96, {((n >> 3)*256 + (n & 3)*64)*1024 + ((n >> 2) & 1)*128}
    buffer_load_dwordx4 v253, s[92:95], s9 offen lds
    s_add_u32 m0, s97, {blk*8192 + 1024}
    s_add_u32 s9, s9, 8192
    buffer_load_dwordx4 v253, s[92:95], s9 offen lds
    """)
    vm.issue(f"wo{n}", 2)

def wo_frag_reads(a, vaddr):
    for j in range(16):
        for h2 in range(2):
            a(f"ds_read_b64_tr_b16 {vr(128+4*j+2*h2,2)}, v{vaddr} offset:{2048*j + 1024*h2}")

def wloc(u):
    if u == 23: return Q7BLK * 8192
    if u < 16 or u >= 20: return RING + (u % 4) * 8192
    return (12 + u - 16) * 8192

def phi_list(src, dst, tmp, packed=True):
    fronts, backs = [], []
    for p in range(8):
        r = src + 2 * p
        t = tmp + 2 * (p % 4)
        if packed:
            fronts.append([f"v_pk_fma_f32 {vr(t,2)}, {vr(r,2)}, s[56:57], v[18:19]"])
            add = [f"v_pk_add_f32 {vr(r,2)}, {vr(r,2)}, s[58:59]"]
        else:
            fronts.append([f"v_fma_f32 v{t}, v{r}, s56, v18", f"v_fma_f32 v{t+1}, v{r+1}, s56, v18"])
            add = [f"v_add_f32 v{r}, s58, v{r}", f"v_add_f32 v{r+1}, s58, v{r+1}"]
        backs.append(([f"v_exp_f32_e64 v{t}, v{t} clamp", f"v_exp_f32_e64 v{t+1}, v{t+1} clamp"],
                      [f"v_max_f32 v{r}, v{r}, v{t}", f"v_max_f32 v{r+1}, v{r+1}, v{t+1}"],
                      add,
                      [f"v_cvt_pk_bf16_f32 v{dst+p}, v{r}, v{r+1}"]))
    out = []
    for step in range(8 + 4):
        if step < 8: out += fronts[step]
        for stage in range(4):
            p = step - 1 - stage
            if 0 <= p < 8: out += backs[p][stage]
    return out

def phi_consts(a):
    a(f"""
    s_mov_b32 s56, {f32(LOG2E)}
    s_mov_b32 s57, {f32(LOG2E)}
    s_mov_b32 s58, {f32(1e-6)}
    s_mov_b32 s59, {f32(1e-6)}
    v_mov_b32 v18, {f32(-LOG2E)}
    v_mov_b32 v19, {f32(-LOG2E)}
    """)

class GemmDma:
    def __init__(self, a): self.a = a; self.vm = VM(a)
    def st_of(self, i):
        self.a(f"""
        s_add_u32 s53, s49, {i}
        s_and_b32 s53, s53, 7
        """)
    def x_item(self, x):
        i, half = x >> 1, x & 1
        self.st_of(i)
        self.a(f"""
        s_lshl_b32 s54, s53, 7
        s_add_u32 s54, s54, s50
        s_add_u32 m0, s97, {x*8192}
        s_add_u32 s54, s54, {half*65536}
        buffer_load_dwordx4 v2, s[36:39], s54 offen lds
        s_add_u32 m0, s97, {x*8192 + 1024}
        s_add_u32 s54, s54, 8192
        buffer_load_dwordx4 v3, s[36:39], s54 offen lds
        """)
        self.vm.issue(f"x{x}", 2)
    def w_item(self, u):
        if u < 16:
            self.st_of(u >> 1)
            base, extra = "s51", (u & 1) * 32 * 3072
        else:
            self.st_of(u - 16)
            base, extra = "s52", 0
        self.a(f"""
        s_mul_i32 s55, s53, {64*3072}
        s_add_u32 s55, s55, {base}
        s_add_u32 m0, s97, {wloc(u)}
        s_add_u32 s55, s55, {extra}
        buffer_load_dwordx4 v252, s[40:43], s55 offen lds
        s_add_u32 m0, s97, {wloc(u) + 1024}
        s_add_u32 s55, s55, {8*3072}
        buffer_load_dwordx4 v252, s[40:43], s55 offen lds
        """)
        self.vm.issue(f"w{u}", 2)

GB = {}
def gemm_first(a):
    ROT = {0: "", 1: "s_add_u32 s49, s49, s45", 2: "s_lshr_b32 s9, s45, 1\n    s_xor_b32 s9, s9, s45\n    s_and_b32 s9, s9, 1\n    s_add_u32 s49, s49, s9", 3: "s_mov_b32 s49, 0"}[ROTM]
    a(f"""
    s_lshr_b32 s47, s45, 1
    s_lshl_b32 s47, s47, 2
    s_lshr_b32 s3, s46, 2
    s_add_u32 s47, s47, s3
    s_and_b32 s48, s45, 1
    s_lshl_b32 s48, s48, 2
    s_and_b32 s8, s46, 3
    s_add_u32 s48, s48, s8
    s_add_u32 s49, s3, s8
    s_lshl_b32 s49, s49, 1
    {ROT}
    s_and_b32 s49, s49, 7
    v_lshrrev_b32 v10, 2, v1
    v_and_b32 v10, 4, v10
    v_xor_b32 v10, v10, v11
    v_lshlrev_b32 v10, 4, v10
    v_mul_u32_u24 v252, 3072, v254
    v_add_u32 v252, v252, v10
    s_lshl_b32 s9, s48, 7
    s_mul_i32 s52, s11, {16*3072}
    s_add_u32 s52, s52, s9
    s_cmp_lt_u32 s44, 4
    s_cbranch_scc1 L_gA
    v_lshrrev_b32 v10, 4, v1
    v_xor_b32 v10, v10, v11
    v_lshlrev_b32 v10, 4, v10
    v_lshl_add_u32 v2, v254, 10, v10
    v_xor_b32 v3, 64, v2
    s_lshl_b32 s50, s47, 17
    s_lshl_b32 s10, s11, 14
    s_add_u32 s50, s50, s10
    s_lshr_b32 s10, s11, 1
    s_add_u32 s10, s10, 1
    s_lshl_b32 s51, s10, 10
    s_add_u32 s51, s51, s9
    s_and_b32 s10, s11, 1
    s_mul_i32 s10, s10, {16*3072}
    s_add_u32 s51, s51, s10
    s_mov_b32 s38, {2 << 20}
    s_mov_b32 s39, 0x00020000
    s_mov_b32 s42, {512 * 1536 * 2}
    s_mov_b32 s43, 0x00020000
    s_waitcnt lgkmcnt(0)
    s_mov_b32 s36, s4
    s_and_b32 s37, s5, 0xffff
    s_mov_b32 s40, s6
    s_and_b32 s41, s7, 0xffff
    """)
    D = GemmDma(a)
    GB["D"] = D
    D.x_item(0); D.x_item(1); D.w_item(0); D.w_item(1); D.w_item(16)

steps = []
for u in range(16): steps += [(u, 0, 2), (u, 1, 2)]
for u in range(16, 24): steps += [(u, k, 4) for k in range(4)]

def frag_addrs(a):
    a(f"""
    v_and_b32 v20, 31, v1
    v_lshrrev_b32 v21, 5, v1
    v_bfe_u32 v22, v1, 1, 3
    v_xor_b32 v22, v22, v21
    s_and_b32 s9, s44, 1
    s_lshl_b32 s9, s9, 13
    v_lshlrev_b32 v20, 7, v20
    v_add_u32 v20, s9, v20
    """)
    for ks in range(4):
        a(f"""
        v_xor_b32 v23, {2*ks}, v22
        v_lshl_add_u32 v{4+ks}, v23, 4, v20
        v_add_u32 v{8+ks}, 0x10000, v{4+ks}
        """)
    a(f"""
    s_lshr_b32 s9, s11, 1            ; hp
    v_bfe_u32 v20, v1, 2, 2          ; r
    v_lshl_add_u32 v22, v21, 3, v20  ; 8g + r
    v_lshlrev_b32 v22, 7, v22
    v_lshrrev_b32 v20, 1, v20
    v_xor_b32 v20, s9, v20
    v_lshl_add_u32 v22, v20, 6, v22
    v_bfe_u32 v20, v1, 4, 1
    v_lshl_add_u32 v22, v20, 5, v22
    v_and_b32 v20, 3, v1
    v_lshl_add_u32 v22, v20, 3, v22
    v_add_u32 v12, {RING}, v22
    v_mov_b32 v201, v22
    v_add_u32 v200, 0x10000, v22
    s_lshl_b32 s9, s47, 2
    s_and_b32 s10, s44, 1
    s_lshl_b32 s10, s10, 1
    s_add_u32 s9, s9, s10
    s_lshl_b32 s9, s9, 5
    s_lshl_b32 s10, s48, 2
    s_add_u32 s9, s9, s10
    s_and_b32 s10, s44, 2
    s_add_u32 s9, s9, s10
    s_lshl_b32 s9, s9, 10
    s_add_u32 s9, s9, {WS_PQ}
    v_lshlrev_b32 v17, 4, v1
    v_add_u32 v15, s9, v17
    v_add_u32 v16, 0x8000, v15
    """)

def reads(a, si):
    u, ks, n = steps[si]
    fs = 24 + 16 * (si & 1)
    slot = u % 4
    if u < 16: i, k4 = u >> 1, 2 * (u & 1) + ks
    else: i, k4 = u - 16, ks
    xr = (4 if i < 4 else 8) + k4
    xo = (i & 3) * 16384
    wr, wo = (200, wloc(u) - 65536 + ks * 2048) if 16 <= u < 20 else (12, wloc(u) - RING + ks * 2048)
    if u == 23: wr, wo = 201, wloc(u) + ks * 2048
    a(f"ds_read_b128 {vr(fs,4)}, v{xr} offset:{xo}")
    a(f"ds_read_b64_tr_b16 {vr(fs+8,2)}, v{wr} offset:{wo}")
    a(f"ds_read_b64_tr_b16 {vr(fs+10,2)}, v{wr} offset:{wo + 512}")
    a(f"ds_read_b128 {vr(fs+4,4)}, v{xr} offset:{xo + 4096}")
    if u < 16:
        a(f"ds_read_b64_tr_b16 {vr(fs+12,2)}, v12 offset:{wo + 4096}")
        a(f"ds_read_b64_tr_b16 {vr(fs+14,2)}, v12 offset:{wo + 4096 + 512}")
        return 6
    return 4

def mfmas(a, si):
    u, ks, n = steps[si]
    fs = 24 + 16 * (si & 1)
    if u < 16:
        for (acc, xa, wb) in ((64, fs, fs+8), (96, fs+4, fs+8), (80, fs, fs+12), (112, fs+4, fs+12)):
            c = ("1.0" if acc in (64, 96) else "0") if si == 0 else vr(acc, 16)
            a(f"v_mfma_f32_32x32x16_bf16 {vr(acc,16)}, {vr(xa,4)}, {vr(wb,4)}, {c}")
    else:
        for (acc, xa, wb) in ((128, fs, fs+8), (144, fs+4, fs+8)):
            c = "1.0" if si == 32 else vr(acc, 16)
            a(f"v_mfma_f32_32x32x16_bf16 {vr(acc,16)}, {vr(wb,4)}, {vr(xa,4)}, {c}")

def need(u):
    if u < 16: return [f"x{2*(u>>1)}", f"x{2*(u>>1)+1}", f"w{u}"]
    return [f"w{u}"]

def gen_gemm_B(a):
    D = GB["D"]; vm = D.vm
    if STAMP: common_late(a)
    frag_addrs(a)
    for x in range(2, XLA): D.x_item(x)
    if LA == 3: D.w_item(2)
    stamp(a, 1)
    def wq_regs(m):
        for ks in range(4):
            for h in range(2):
                a(f"ds_read_b64_tr_b16 {vr(64+16*m+4*ks+2*h,2)}, v200 offset:{wloc(16+m) - 65536 + ks*2048 + 512*h}")
    def xq_reads(q, slot):
        fs = 24 + 8 * slot
        a(f"ds_read_b128 {vr(fs,4)}, v{4 + (q & 3)} offset:{(q >> 2)*16384}")
        a(f"ds_read_b128 {vr(fs+4,4)}, v{4 + (q & 3)} offset:{(q >> 2)*16384 + 4096}")
    def q_mfmas(q, slot):
        fs = 24 + 8 * slot
        for acc, xa in ((128, fs), (144, fs + 4)):
            c = "1.0" if q == 0 else vr(acc, 16)
            a(f"v_mfma_f32_32x32x16_bf16 {vr(acc,16)}, {vr(64+4*q,4)}, {vr(xa,4)}, {c}")
    prev = []
    a(f"s_setprio {PRIO_B1}")
    for j in range(16):
        nd = need(j)
        if j in (1, 3, 5, 7): nd = nd + [f"w{16 + j//2}"]
        vm.wait(nd, "lgkmcnt(0)")
        a("s_barrier")
        if j in (0, 4, 8, 12): stamp(a)
        cur = [(q, (2 * j + i) % 4) for i, q in enumerate(THIN.get(j, []))]
        if j in (1, 3, 5, 7): wq_regs(j // 2)
        for q, sl in cur: xq_reads(q, sl)
        if MF_FIRST:
            for q, sl in prev: q_mfmas(q, sl)
        if XFIRST and XLA + j < 16: D.x_item(XLA + j)
        if j + LA < 16: D.w_item(j + LA)
        if not XFIRST and XLA + j < 16: D.x_item(XLA + j)
        if j in (0, 2, 4): D.w_item(17 + j // 2)
        if j == 9:
            if not STAMP: common_late(a)
            phi_consts(a)
        if j == 12:
            D.w_item(23)
            a("""
            v_and_b32 v202, 7, v1
            v_lshlrev_b32 v202, 2, v202
            global_load_dword v203, v202, s[32:33] sc1
            """)
            vm.issue("gate")
        if j >= 13: D.w_item(20 + j - 13)
        if j == 15: wo_item(a, vm, 0)
        if not MF_FIRST:
            for q, sl in prev: q_mfmas(q, sl)
        prev = cur
    done = sum(len(v) for v in THIN.values())
    a(f"s_setprio {PRIO_B}")
    vm.wait(["w20", "w21", "w22", "w23"], "lgkmcnt(0)")
    a("s_barrier")
    stamp(a)
    assert not prev and done >= 8
    lg = LG(a)
    Q = list(range(done, 32))
    def p2reads(n):
        q = Q[n]
        fs = P2F[n % len(P2F)]
        i, ks = q >> 2, q & 3
        u = 16 + i
        xr, xo = (4 if i < 4 else 8) + ks, (i & 3) * 16384
        lg.rd(f"ds_read_b128 {vr(fs,4)}, v{xr} offset:{xo}")
        if q >= 16:
            wr, wo = (201, wloc(u) + ks * 2048) if u == 23 else (12, wloc(u) - RING + ks * 2048)
            lg.rd(f"ds_read_b64_tr_b16 {vr(fs+8,2)}, v{wr} offset:{wo}")
            lg.rd(f"ds_read_b64_tr_b16 {vr(fs+10,2)}, v{wr} offset:{wo + 512}")
        lg.rd(f"ds_read_b128 {vr(fs+4,4)}, v{xr} offset:{xo + 4096}")
    for n in range(P2D): p2reads(n)
    for n, q in enumerate(Q):
        fs = P2F[n % len(P2F)]
        wf = fs + 8 if q >= 16 else 64 + 4 * q
        lg.need(f"v_mfma_f32_32x32x16_bf16 {vr(128,16)}, {vr(wf,4)}, {vr(fs,4)}, {vr(128,16)}")
        lg.need(f"v_mfma_f32_32x32x16_bf16 {vr(144,16)}, {vr(wf,4)}, {vr(fs+4,4)}, {vr(144,16)}")
        if n + P2D < len(Q): p2reads(n + P2D)
    stamp(a)
    for ins in phi_list(128, 160, 56): a(ins)
    a("""
    global_store_dwordx4 v15, v[160:163], s[34:35] sc1
    global_store_dwordx4 v15, v[164:167], s[34:35] offset:1024 sc1
    """)
    for ins in phi_list(144, 168, 56): a(ins)
    a("""
    global_store_dwordx4 v16, v[168:171], s[34:35] sc1
    global_store_dwordx4 v16, v[172:175], s[34:35] offset:1024 sc1
    s_setprio 0
    v_add_u32 v238, 0x10000, v238
    s_lshl_b32 s9, s47, 1
    s_and_b32 s10, s44, 1
    s_add_u32 s9, s9, s10
    s_mul_i32 s9, s9, %d
    s_lshl_b32 s10, s48, 7
    s_add_u32 s9, s9, s10
    s_and_b32 s10, s44, 2
    s_lshl_b32 s10, s10, 1
    s_add_u32 s9, s9, s10
    s_add_u32 s15, s9, %d
    """ % (ZS, WS_Z + 1536))
    stamp(a)
    gate_verify(a, 203, 20, 21)
    a("s_mov_b32 s14, 1")
    if BWPOS == 2: a("s_barrier")
    if SUBR:
        a("s_call_b64 s[100:101], L_setup")
        a("s_nop 0")
    if BWPOS == 25: a("s_barrier")
    a("s_waitcnt vmcnt(0)")
    store_flag(a, "s15", 22, 23)
    stamp(a)
    if BWPOS == 3: a("s_barrier")
    for n in (WO_LATE[1::2] if ILV else WO_LATE[NLA:]): wo_item(a, vm, n)
    a("s_branch L_p2w")

JX = 19

def gen_gemm_A(a):
    a("L_gA:")
    a("s_nop 4")
    D = GemmDma(a); vm = D.vm
    frag_addrs(a)
    phi_consts(a)
    a(f"""
    v_and_b32 v20, 16, v1
    v_cmp_eq_u32 s[60:61], 0, v20
    v_mov_b32 v196, 0x3f803f80
    v_mov_b32 v197, 0x3f803f80
    v_mov_b32 v198, 0x3f803f80
    v_mov_b32 v199, 0x3f803f80
    s_lshl_b32 s9, s48, 2
    s_add_u32 s9, s9, s11
    s_mul_i32 s98, s9, {ZS}
    s_add_u32 s98, s98, {WS_Z}
    v_lshlrev_b32 v13, 2, v1
    v_add_u32 v13, s98, v13
    s_lshl_b32 s9, s48, 2
    s_lshr_b32 s10, s47, 2
    s_add_u32 s9, s9, s10
    s_mul_i32 s99, s9, {ZS}
    s_and_b32 s10, s47, 3
    s_lshl_b32 s10, s10, 7
    s_add_u32 s99, s99, s10
    s_lshl_b32 s10, s11, 2
    s_add_u32 s99, s99, s10
    s_add_u32 s99, s99, {WS_Z + 3328}
    s_waitcnt lgkmcnt(0)
    """)
    common_late(a)
    if TLBW:
        a(f"""
        v_and_b32 v232, 3, v1
        v_lshlrev_b32 v232, 21, v232
        v_add_u32 v232, 4096, v232
        v_cmp_eq_u32 vcc, 4096, v232
        v_cndmask_b32 v232, v232, 0, vcc
        v_min_u32 v232, {(4 << 20) + 32768}, v232
        v_or_b32 v233, 0x6000, v232
        v_cmp_lt_u32 vcc, {4 << 20}, v232
        v_cndmask_b32 v232, v232, v233, vcc
        global_load_dword v233, v232, s[34:35]
        s_lshl_b32 s9, s62, 15
        s_lshl_b32 s10, s63, 8
        s_add_u32 s9, s9, s10
        v_mov_b32 v234, s9
        global_load_dword v235, v234, s[30:31]
        v_mov_b32 v234, 0
        global_load_dword v236, v234, s[12:13]
        """)
    a("""
    v_and_b32 v202, 7, v1
    v_lshlrev_b32 v202, 2, v202
    ; hand-over flag of head L: block 5, region L, in a row the head does not use (even: row 24, odd: row 4)
    s_and_b32 s9, s44, 1
    s_mul_i32 s9, s9, %d
    s_sub_u32 s9, %d, s9
    s_add_u32 s9, s9, s97
    v_mov_b32 v204, s9                   ; inbox
    s_xor_b32 s10, s44, 1
    s_and_b32 s9, s10, 1
    s_mul_i32 s9, s9, %d
    s_sub_u32 s9, %d, s9
    s_lshl_b32 s10, s10, 11
    s_add_u32 s9, s9, s10
    v_mov_b32 v206, s9                   ; partner's inbox
    v_mov_b32 v205, 0
    v_mov_b32 v207, 1
    """ % (20*64, XB*8192 + 24*64, 20*64, XB*8192 + 24*64))
    stamp(a, 1)
    US = (24, 128)
    def ureads(u):
        L = []
        i = u >> 1
        for ks in range(2):
            fs = US[u & 1] + 16 * ks
            xr, xo = (4 if i < 4 else 8) + 2 * (u & 1) + ks, (i & 3) * 16384
            wo = wloc(u) - RING + ks * 2048
            L += [f"ds_read_b128 {vr(fs,4)}, v{xr} offset:{xo}",
                  f"ds_read_b64_tr_b16 {vr(fs+8,2)}, v12 offset:{wo}",
                  f"ds_read_b64_tr_b16 {vr(fs+10,2)}, v12 offset:{wo + 512}",
                  f"ds_read_b128 {vr(fs+4,4)}, v{xr} offset:{xo + 4096}",
                  f"ds_read_b64_tr_b16 {vr(fs+12,2)}, v12 offset:{wo + 4096}",
                  f"ds_read_b64_tr_b16 {vr(fs+14,2)}, v12 offset:{wo + 4096 + 512}"]
        return L
    def umfmas(u):
        M = []
        for ks in range(2):
            fs = US[u & 1] + 16 * ks
            for (acc, xa, wb) in ((64, fs, fs+8), (96, fs+4, fs+8), (80, fs, fs+12), (112, fs+4, fs+12)):
                c = ("1.0" if acc in (64, 96) else "0") if (u == 0 and ks == 0) else vr(acc, 16)
                M.append(f"v_mfma_f32_32x32x16_bf16 {vr(acc,16)}, {vr(xa,4)}, {vr(wb,4)}, {c}")
        return M
    a("s_barrier")
    stamp(a)
    for x in ureads(0): a(x)
    for u in range(16):
        a("s_waitcnt lgkmcnt(0)")
        if DYNP and u == 15: a("s_setprio 3")
        a("s_barrier")
        if u in (3, 7, 11, 15): stamp(a)
        R = ureads(u + 1) if u < 15 else []
        if u == 11: R.append("global_load_dword v203, v202, s[32:33] sc1")
        if u == 12: R.append("ds_write_b32 v204, v205")
        k = 0
        for i, m in enumerate(umfmas(u)):
            a(m)
            tgt = min(len(R), RPM * (i + 1))
            while k < tgt: a(R[k]); k += 1
    a(f"s_setprio {PRIO_A}")
    a(f"""
    v_and_b32 v25, 31, v1
    v_lshlrev_b32 v25, 6, v25
    v_lshrrev_b32 v24, 5, v1
    v_lshl_add_u32 v25, v24, 5, v25
    s_and_b32 s9, s44, 1
    s_lshl_b32 s10, s9, 13
    s_mul_i32 s9, s9, {15*64}
    s_add_u32 s9, s9, s97
    s_add_u32 s9, s9, {XB*8192}
    v_lshlrev_b32 v24, 2, v1
    v_add_u32 v24, s9, v24
    s_and_b32 s9, s44, 2
    s_lshl_b32 s9, s9, 11
    s_add_u32 s9, s9, s10
    s_add_u32 s9, s9, {XB*8192}
    v_add_u32 v25, s9, v25
    """)
    P = phi_list(64, 160, 56, APK) + phi_list(96, 168, 56, APK)
    Vc = [f"v_cvt_pk_bf16_f32 v{176+p}, v{80+2*p}, v{81+2*p}" for p in range(8)] + [f"v_cvt_pk_bf16_f32 v{184+p}, v{112+2*p}, v{113+2*p}" for p in range(8)]
    E = []
    pendm = []
    for ins in P:
        E.append(ins)
        if pendm:
            pendm[0][0] -= 1
            if pendm[0][0] <= 0: E.append(pendm.pop(0)[1])
        if ins.startswith("v_cvt_pk"):
            dreg = int(ins.split()[1][1:-1])
            k = dreg - 160
            E.append(Vc[k])
            if k % 4 == 3:
                j = k // 4
                c1 = "0" if j == 0 else vr(128, 16)
                c2 = "0" if j == 0 else vr(144, 16)
                pendm.append([2, f"v_mfma_f32_32x32x16_bf16 {vr(128,16)}, {vr(160+4*j,4)}, {vr(176+4*j,4)}, {c1}"])
                pendm.append([5, f"v_mfma_f32_32x32x16_bf16 {vr(144,16)}, {vr(160+4*j,4)}, v[196:199], {c2}"])
    E += [m[1] for m in pendm]
    E += [f"v_cndmask_b32 v{32+r}, v{144+r}, v{128+r}, s[60:61]" for r in range(8)]
    E += [f"v_cndmask_b32 v{40+r}, v{136+r}, v{152+r}, s[60:61]" for r in range(8)]
    for ins in E:
        if DYNP and "mfma" in ins:
            a("s_setprio 3"); a(ins); a("s_setprio 0")
        else: a(ins)
    lw0, lw1 = label("w"), label("w")
    a(f"""
    s_mov_b32 exec_lo, 0x1ffff
    s_mov_b32 exec_hi, 0x1ffff
    ds_write_b128 v25, v[32:35]
    ds_write_b128 v25, v[36:39] offset:16
    s_mov_b32 exec_lo, 0xffff8000
    s_mov_b32 exec_hi, 0xffff8000
    ds_write_b128 v25, v[40:43] offset:2048
    ds_write_b128 v25, v[44:47] offset:2064
    s_mov_b64 exec, -1
    ds_write_b32 v206, v207
    s_waitcnt vmcnt(0)
    """)
    gate_verify(a, 203, 20, 21)
    stamp(a)
    a(f"""
    s_mov_b32 s10, 0
    {lw0}:
    ds_read_b32 v20, v204
    s_add_u32 s10, s10, 1
    s_waitcnt lgkmcnt(0)
    v_cmp_eq_u32 vcc, 0, v20
    s_cmp_gt_u32 s10, {SPIN_MAX*16}
    s_cbranch_scc1 {lw1}
    s_cbranch_vccnz {lw0}
    {lw1}:
    """)
    for k in range(5):
        a(f"ds_read_b32 v{32+k}, v24 offset:{256*k}")
        a(f"ds_read_b32 v{40+k}, v24 offset:{8192 + 256*k}")
    for k in range(5):
        a(f"s_waitcnt lgkmcnt({8-2*k})")
        a(f"v_add_f32 v{32+k}, v{32+k}, v{40+k}")
        if k == 4: a("s_mov_b64 exec, 0xffff")
        a(f"global_atomic_add_f32 v13, v{32+k}, s[34:35] offset:{256*k} sc1")
    a("s_mov_b64 exec, -1")
    a("s_setprio 0")
    vm.issue("at", 5)
    stamp(a)
    for n in (XB, XB + 1): wo_item(a, vm, n)
    a("s_mov_b32 s14, 1")
    if SUBR:
        a("s_call_b64 s[100:101], L_setup")
        a("s_nop 0")
    vm.wait("at")
    store_flag(a, "s99", 22, 23)
    stamp(a)
    a("s_barrier")
    for n in (WO_LATE[0::2] if ILV else WO_LATE[:NLA]): wo_item(a, vm, n)
    a("s_branch L_p2w")

UVP = 2064
UVH = 29 * UVP
KCL = 172 * 16
KCP = 4 * KCL + 64
XP0 = 143360
XPC = 5120
XPP = 1280
KC0 = XP0 - 4 * KCP
S_LEN = 2112
S0 = KC0 - 8 * S_LEN
assert KC0 + 3 * KCP >= 58 * UVP and S0 >= 81920 and XP0 + 4 * XPC == LDS
CNT_LDS = KC0 + 3 * KCP + 4 * KCL
assert KC0 % 16 == 0 and S0 % 16 == 0 and UVH + 2048 < 65536

def ssm_first(a):
    a(f"""
    s_lshl_b32 s47, s45, 4
    s_add_u32 s47, s47, s46           ; cg
    s_lshr_b32 s49, s44, 2
    s_lshl_b32 s9, s47, 2
    s_add_u32 s9, s9, s11
    s_lshl_b32 s9, s9, 8
    s_lshl_b32 s10, s49, 7
    s_add_u32 s9, s9, s10
    v_lshlrev_b32 v2, 1, v1
    v_add_u32 v2, s9, v2
    s_lshl_b32 s8, s47, 3
    s_lshr_b32 s9, s46, 1
    s_add_u32 s9, s9, s44
    s_and_b32 s9, s9, 7               ; bhi
    v_bfe_u32 v10, v1, 1, 3
    s_lshl_b32 s10, s9, 3
    v_add_u32 v250, s10, v10          ; beta
    v_lshrrev_b32 v251, 4, v1         ; G
    v_and_b32 v12, 1, v1              ; half
    v_lshlrev_b32 v13, 3, v250
    v_lshl_add_u32 v13, v251, 1, v13
    v_add_u32 v13, v13, v12           ; q
    v_lshlrev_b32 v13, 12, v13
    v_add_u32 v249, s8, v13
    s_xor_b32 s15, s49, 1
    s_lshl_b32 s15, s15, 7
    s_add_u32 s15, s15, s47
    s_waitcnt lgkmcnt(0)
    global_load_ushort v4, v2, s[16:17]
    global_load_ushort v5, v2, s[18:19]
    global_load_ushort v6, v2, s[20:21]
    global_load_ushort v7, v2, s[22:23]
    s_load_dwordx2 s[52:53], s[24:25], s8
    s_load_dwordx2 s[54:55], s[26:27], s8
    s_cmp_lt_u32 s15, 8
    s_cbranch_scc1 L_zero
    L_zero_back:
    s_barrier
    global_load_dwordx2 v[240:241], v249, s[4:5]
    global_load_dwordx2 v[242:243], v249, s[4:5] offset:1024
    s_branch L_ssm
    """)

def gen_ssm(a):
    vm = VM(a)
    a(f"""
    L_zero:
    s_lshl_b32 s9, s47, 2
    s_add_u32 s9, s9, s11
    s_mul_i32 s9, s9, {ZS}
    s_add_u32 s9, s9, {WS_Z}
    v_lshlrev_b32 v20, 4, v1
    v_add_u32 v20, s9, v20
    v_mov_b32 v24, 0
    v_mov_b32 v25, 0
    v_mov_b32 v26, 0
    v_mov_b32 v27, 0
    global_store_dwordx4 v20, v[24:27], s[34:35] sc0 sc1
    global_store_dwordx4 v20, v[24:27], s[34:35] offset:1024 sc0 sc1
    global_store_dwordx4 v20, v[24:27], s[34:35] offset:2048 sc0 sc1
    global_store_dwordx4 v20, v[24:27], s[34:35] offset:{ZS-1024} sc0 sc1
    s_branch L_zero_back
    """)
    a("L_ssm:")
    a("s_nop 4")
    common_late(a)
    a(f"""
    s_mul_i32 s50, s11, {KCL}
    s_add_u32 s50, s50, {KC0}
    s_lshl_b32 s51, s11, 9
    v_mul_u32_u24 v14, {XPP}, v251
    v_lshl_add_u32 v14, v250, 4, v14
    v_lshl_add_u32 v14, v12, 3, v14
    v_add_u32 v248, {XP0 + 256}, v14
    s_lshl_b32 s9, s49, 8
    s_add_u32 s98, s9, s51
    s_add_u32 s99, s98, {UVH}
    s_lshl_b32 s9, s47, 2
    s_add_u32 s9, s9, s11
    s_lshl_b32 s48, s9, 12            ; channel*4096
    s_waitcnt lgkmcnt(0)
    s_cmp_ge_u32 s11, 2
    s_cselect_b32 s9, s53, s52
    s_cselect_b32 s60, s55, s54
    s_lshl_b32 s10, s9, 16
    s_and_b32 s9, s9, 0xffff0000
    s_lshl_b32 s61, s60, 16
    s_and_b32 s60, s60, 0xffff0000
    s_bitcmp1_b32 s11, 0
    s_cselect_b32 s9, s9, s10
    s_cselect_b32 s60, s60, s61
    s_mov_b32 s56, {f32(L2E_HI)}
    s_mov_b32 s57, {f32(L2E_LO)}
    v_mov_b32 v8, s9
    """)
    def exp_bf16(x, t0, t1):
        a(f"""
        v_mul_f32 v{t0}, s56, v{x}
        v_rndne_f32 v{t1}, v{t0}
        v_sub_f32 v{t0}, v{t0}, v{t1}
        v_fma_f32 v{t0}, v{x}, s57, v{t0}
        v_exp_f32 v{t0}, v{t0}
        v_cvt_i32_f32 v{t1}, v{t1}
        v_ldexp_f32 v{t0}, v{t0}, v{t1}
        v_cvt_pk_bf16_f32 v{t0}, v{t0}, v{t0}
        v_lshlrev_b32 v{x}, 16, v{t0}
        """)
    exp_bf16(8, 10, 11)
    a("""
    s_mov_b32 m0, s98
    v_mov_b32 v10, 0x3f80
    ds_write_addtid_b32 v10
    """)
    stamp(a, 1)
    a("s_waitcnt vmcnt(2)")
    stamp(a)
    lf = label("f")
    a(f"""
    s_cmp_ge_u32 s15, 8
    s_cbranch_scc1 {lf}
    s_lshl_b32 s9, s47, 2
    s_add_u32 s9, s9, s11
    v_mov_b32 v20, s9
    v_mov_b32 v21, 1
    s_mov_b64 exec, 1
    global_store_byte v20, v21, s[32:33] sc0 sc1
    s_mov_b64 exec, -1
    {lf}:
    """)
    a("""
    v_lshlrev_b32 v4, 16, v4
    v_lshlrev_b32 v5, 16, v5
    v_lshlrev_b32 v6, 16, v6
    v_lshlrev_b32 v7, 16, v7
    """)
    exp_bf16(4, 10, 11)
    a(f"""
    v_mul_f32 v4, v4, v8
    v_mul_f32 v4, {f32(-LOG2E)}, v4
    v_mul_f32 v5, v5, v8
    v_mul_f32 v5, 0.15915494, v5
    v_add_f32 v9, v8, v8
    v_mul_f32 v30, v6, v9
    v_mul_f32_e64 v31, v7, -v9
    """)
    V = lambda b: 64 + 2 * b
    U = lambda c: 30 + 2 * c
    pw = [(8, V(1)), (1, 20), (256, 24), (512, 26), (1024, 28)]
    for i, (p, d) in enumerate(pw):
        t = 10 + 2 * i
        if p == 1:
            a(f"v_exp_f32 v{t}, v4")
            a(f"v_fract_f32 v{t+1}, v5")
        else:
            a(f"v_mul_f32 v{t}, {f32(float(p))}, v4")
            a(f"v_mul_f32 v{t+1}, {f32(float(p))}, v5")
            a(f"v_exp_f32 v{t}, v{t}")
            a(f"v_fract_f32 v{t+1}, v{t+1}")
    for i, (p, d) in enumerate(pw):
        t = 10 + 2 * i
        a(f"v_cos_f32 v{d}, v{t+1}")
        a(f"v_sin_f32 v{d+1}, v{t+1}")
    for i, (p, d) in enumerate(pw):
        t = 10 + 2 * i
        a(f"v_mul_f32 v{d}, v{d}, v{t}")
        a(f"v_mul_f32 v{d+1}, v{d+1}, v{t}")
    def cm1(d, x, y):
        return f"v_pk_mul_f32 {vr(d,2)}, {vr(x,2)}, {vr(y,2)} op_sel:[0,0] op_sel_hi:[1,0]"
    def cm2(d, x, y, conj):
        neg = "neg_hi:[1,0,0]" if conj else "neg_lo:[1,0,0]"
        return f"v_pk_fma_f32 {vr(d,2)}, {vr(x,2)}, {vr(y,2)}, {vr(d,2)} op_sel:[1,1,0] op_sel_hi:[0,1,1] {neg}"
    pk = [0]; cur = [0]
    def puts(lst):
        W = []
        for src, rows in lst:
            if not rows: continue
            t = 10 + (pk[0] % 10); pk[0] += 1
            a(f"v_cvt_pk_bf16_f32 v{t}, v{src}, v{src+1}")
            W += [(r, t) for r in rows]
        W.sort(key=lambda x: (x[0] >= 29) != bool(cur[0]))
        for r, t in W:
            h = int(r >= 29)
            if h != cur[0]:
                a(f"s_mov_b32 m0, s{98+h}"); cur[0] = h
            a(f"ds_write_addtid_b32 v{t} offset:{(r - 29*h)*UVP}")
    def batch(items):
        for (d, x, y, cj, rows) in items: a(cm1(d, x, y))
        for (d, x, y, cj, rows) in items: a(cm2(d, x, y, cj))
        puts([(d, rows) for (d, x, y, cj, rows) in items])
    urow = {0: [32+0], 1: [32+1], 2: [32+2], 3: [32+3], 4: [32+8], 5: [32+9], 6: [32+10], 7: [32+11], 8: [],
            256: [32+4, 32+5], 258: [32+6], 260: [32+7, 32+12, 32+13], 262: [32+14], 264: [32+15],
            512: [32+16], 516: [32+17], 520: [32+18], 1032: [32+19],
            768: [32+20], 772: [32+21], 776: [32+22], 1544: [32+23], 1288: [32+24], 1800: [32+25]}
    puts([(V(1), [1]), (30, urow[0])])
    H = {}
    nxt = [128]
    def home(e):
        H[e] = nxt[0]; nxt[0] += 2; return H[e]
    batch([(V(2), V(1), V(1), False, [2]), (U(1), U(0), 20, True, urow[1]), (home(256), U(0), 24, True, urow[256]), (home(512), U(0), 26, True, urow[512])])
    batch([(V(3), V(2), V(1), False, [3]), (V(4), V(2), V(2), False, [4]), (U(2), U(1), 20, True, urow[2]), (home(768), H[256], 26, True, urow[768])])
    extra = {
        0: [(U(3), U(2), 20, True, urow[3]), (lambda: (home(258), U(2), 24, True, urow[258]))],
        1: [(U(4), U(3), 20, True, urow[4])],
        2: [(U(5), U(4), 20, True, urow[5]), (lambda: (home(260), U(4), 24, True, urow[260])), (lambda: (home(516), U(4), 26, True, urow[516]))],
        3: [(U(6), U(5), 20, True, urow[6]), (lambda: (home(772), H[260], 26, True, urow[772]))],
        4: [(U(7), U(6), 20, True, urow[7]), (lambda: (home(262), U(6), 24, True, urow[262]))],
        5: [(U(8), U(7), 20, True, urow[8])],
        6: [(lambda: (home(264), U(8), 24, True, urow[264])), (lambda: (home(520), U(8), 26, True, urow[520])), (lambda: (home(1032), U(8), 28, True, urow[1032]))],
    }
    for step in range(7):
        items = []
        for j in range(4):
            b = 5 + 4 * step + j
            if b <= 31:
                items.append((V(b), V(b - 4), V(4), False, [b]))
        for e in extra[step]:
            items.append(e() if callable(e) else e)
        batch(items)
        if step == GSTEP[0]: a("global_load_dwordx2 v[244:245], v249, s[4:5] offset:2048")
        if step == GSTEP[1]: a("global_load_dwordx2 v[246:247], v249, s[4:5] offset:3072")
    batch([(home(776), H[264], 26, True, urow[776]), (home(1288), H[264], 28, True, urow[1288]), (home(1544), H[520], 28, True, urow[1544])])
    batch([(home(1800), H[776], 28, True, urow[1800])])
    stamp(a)
    BASE = 3 * KCP
    a(f"""
    v_lshlrev_b32 v6, 4, v1
    v_add_u32 v6, s50, v6
    s_cmp_lg_u32 s49, 0
    s_cbranch_scc1 L_s_h1
    v_and_b32 v10, 31, v1
    v_min_u32 v11, 25, v10
    v_add_u32 v11, 32, v11
    v_mul_u32_u24 v10, {UVP}, v10
    v_mul_u32_u24 v11, {UVP}, v11
    v_lshrrev_b32 v12, 5, v1
    v_lshlrev_b32 v12, 4, v12
    v_add_u32 v12, s51, v12
    v_add_u32 v4, v10, v12
    v_add_u32 v5, v11, v12
    v_lshlrev_b32 v10, 4, v1
    s_add_u32 s9, s50, {BASE + 71*16}
    v_sub_u32 v10, s9, v10
    v_and_b32 v11, 3, v1
    v_lshlrev_b32 v11, 7, v11
    v_bfe_u32 v12, v1, 2, 3
    v_lshlrev_b32 v12, 1, v12
    v_sub_u32 v11, v11, v12
    v_lshrrev_b32 v12, 5, v1
    v_lshlrev_b32 v12, 5, v12
    v_sub_u32 v11, v11, v12
    s_add_u32 s9, s50, {BASE + 140*16}
    v_add_u32 v11, s9, v11
    v_mov_b32 v13, s60
    v_cmp_eq_u32 vcc, 0, v1
    v_cndmask_b32 v13, 0, v13, vcc
    v_mov_b32 v12, s50
    s_waitcnt lgkmcnt(0)
    s_barrier
    """)
    stamp(a)
    def kr(ks):
        a(f"ds_read_b128 {vr(64+8*(ks%8),4)}, v5 offset:{32*ks}")
        a(f"ds_read_b128 {vr(68+8*(ks%8),4)}, v4 offset:{32*ks}")
    for ks in range(7): kr(ks)
    for ks in range(16):
        if ks + 7 < 16:
            kr(ks + 7)
            a("s_waitcnt lgkmcnt(14)")
        else:
            a(f"s_waitcnt lgkmcnt({2*(15-ks)})")
        c = "0" if ks == 0 else vr(32, 16)
        a(f"v_mfma_f32_32x32x16_bf16 {vr(32,16)}, {vr(64+8*(ks%8),4)}, {vr(68+8*(ks%8),4)}, {c}")
    stamp(a)
    a("v_add_f32 v32, v32, v13")
    for k in range(4):
        a(f"v_cvt_pk_bf16_f32 v{52+k}, v{32+7-2*k}, v{32+6-2*k}")
    a(f"""
    v_cvt_pk_bf16_f32 v56, v42, v42
    v_cvt_pk_bf16_f32 v57, v41, v41
    v_cvt_pk_bf16_f32 v58, v41, v40
    v_cvt_pk_bf16_f32 v59, v40, v40
    v_cvt_pk_bf16_f32 v60, v43, v44
    ds_write_b128 v10, v[52:55] offset:1024
    ds_write_b128 v10, v[56:59]
    ds_write_b16 v11, v60 offset:62
    ds_write_b16_d16_hi v11, v60 offset:46
    v_mov_b32 v60, 0
    v_and_b32 v61, 0xffff0000, v56
    v_mov_b32 v62, v56
    v_mov_b32 v63, v56
    s_mov_b32 exec_lo, 0
    s_mov_b32 exec_hi, 0x80000000
    ds_write_b128 v12, v[60:63] offset:{BASE + 7*16}
    s_mov_b64 exec, -1
    s_branch L_s_h2
    L_s_h1:
    s_waitcnt lgkmcnt(0)
    s_barrier
    v_mov_b32 v16, 0
    v_mov_b32 v17, 0
    v_mov_b32 v18, 0
    v_mov_b32 v19, 0
    v_subrev_u32 v10, 11, v1
    v_lshrrev_b32 v11, 2, v10
    v_and_b32 v10, 3, v10
    v_lshl_add_u32 v10, v11, 3, v10
    v_add_u32 v10, 144, v10
    v_add_u32 v11, 129, v1
    v_cmp_gt_u32 vcc, 11, v1
    v_cndmask_b32 v10, v10, v11, vcc
    v_cmp_gt_u32 vcc, 7, v1
    v_cndmask_b32 v10, v10, v1, vcc
    v_lshlrev_b32 v10, 4, v10
    v_add_u32 v10, s50, v10
    s_mov_b64 exec, 0x7ffffff
    ds_write_b128 v10, v[16:19] offset:{BASE}
    s_mov_b64 exec, -1
    v_mul_u32_u24 v14, {XPP}, v251
    v_and_b32 v15, 15, v1
    v_lshl_add_u32 v14, v15, 4, v14
    s_mul_i32 s9, s11, {XPC}
    s_add_u32 s9, s9, {XP0}
    v_add_u32 v14, s9, v14
    ds_write_b128 v14, v[16:19]
    L_s_h2:
    s_waitcnt lgkmcnt(0)
    s_barrier
    """)
    stamp(a, 6)
    def copy_pass(D, T, off, masked):
        for k in range(4): a(f"v_mov_b32 v{T+k}, v{D+1+k}")
        for k in range(4): a(f"v_alignbit_b32 v{T+4+k}, v{D+k+1}, v{D+k}, 16")
        for k in range(4): a(f"v_alignbit_b32 v{T+8+k}, v{D+k+2}, v{D+k+1}, 16")
        if masked: a("s_mov_b32 exec_hi, 0xfff")
        a(f"ds_write_b128 v7, {vr(T,4)} offset:{1*KCP + off}")
        a(f"ds_write_b128 v7, {vr(T+4,4)} offset:{2*KCP + off}")
        a(f"ds_write_b128 v7, {vr(T+8,4)} offset:{0*KCP + off}")
        if masked: a("s_mov_b64 exec, -1")
    a(f"""
    s_lshl_b32 s9, s49, 10
    v_add_u32 v7, s9, v6
    ds_read_b128 v[64:67], v7 offset:{BASE}
    ds_read_b64 v[68:69], v7 offset:{BASE + 16}
    ds_read_b128 v[72:75], v7 offset:{BASE + 1024}
    ds_read_b64 v[76:77], v7 offset:{BASE + 1024 + 16}
    s_mov_b32 s9, 0x05040100
    s_mov_b32 s10, 0x07060302
    s_waitcnt lgkmcnt(2)
    """)
    copy_pass(64, 96, 0, False)
    a("""
    s_cmp_eq_u32 s49, 0
    s_cbranch_scc1 L_s_c1
    s_waitcnt lgkmcnt(3)
    """)
    copy_pass(72, 112, 1024, True)
    stamp(a, 7)
    a("""
    s_waitcnt vmcnt(0)
    s_branch L_s_c2
    L_s_c1:
    """)
    stamp(a, 7)
    a("""
    s_waitcnt vmcnt(0)
    L_s_c2:
    """)
    stamp(a)
    a(f"""
    v_perm_b32 v16, v242, v240, s9
    v_perm_b32 v17, v246, v244, s9
    v_perm_b32 v18, v242, v240, s10
    v_perm_b32 v19, v246, v244, s10
    v_perm_b32 v20, v243, v241, s9
    v_perm_b32 v21, v247, v245, s9
    v_perm_b32 v22, v243, v241, s10
    v_perm_b32 v23, v247, v245, s10
    ds_write_b64 v248, v[16:17]
    ds_write_b64 v248, v[18:19] offset:{XPC}
    ds_write_b64 v248, v[20:21] offset:{2*XPC}
    ds_write_b64 v248, v[22:23] offset:{3*XPC}
    s_cmp_lg_u32 s49, 0
    s_cbranch_scc1 L_s_help
    """)
    a(f"""
    v_and_b32 v10, 3, v1
    v_mul_u32_u24 v10, {KCP}, v10
    v_bfe_u32 v12, v1, 2, 2               ; i2
    v_lshlrev_b32 v13, 1, v251
    v_sub_u32 v13, v13, v12
    v_lshlrev_b32 v13, 3, v13
    v_add3_u32 v10, v10, v13, s50
    v_add_u32 v4, 24, v10
    s_mul_i32 s9, s11, {XPC}
    s_add_u32 s9, s9, {XP0}
    v_mul_u32_u24 v13, {XPP}, v251
    v_and_b32 v14, 15, v1
    v_lshl_add_u32 v13, v14, 4, v13
    v_add_u32 v7, s9, v13
    v_lshlrev_b32 v15, 6, v14
    v_and_b32 v9, 1, v251
    v_lshl_add_u32 v15, v9, 5, v15
    v_lshrrev_b32 v9, 1, v251
    v_lshl_add_u32 v15, v9, 4, v15
    s_add_u32 s10, s48, {WS_BG}
    v_add_u32 v9, s10, v15
    v_lshl_add_u32 v13, v251, 3, v12
    v_lshlrev_b32 v13, 6, v13
    v_and_b32 v14, 3, v1
    v_lshl_add_u32 v13, v14, 3, v13
    s_mul_i32 s9, s11, {2*S_LEN}
    s_add_u32 s9, s9, {S0}
    v_add_u32 v8, s9, v13                 ; vS
    s_setprio {PRIO_C}
    s_waitcnt lgkmcnt(0)
    s_barrier
    """)
    stamp(a)
    ACC = lambda rho, ct: 32 + 4 * (4 * rho + ct)
    fB = lambda s: 64 + 32 * (s % 2)
    fA = lambda s, lv, rho: (64 + 32 * (s % 2) + 16 + 8 * lv + 4 * rho) if lv < 2 else (128 + 8 * s + 4 * rho)
    def levels(s): return [0, 1, 2] if s <= 1 else [0, 1]
    def rhos(sig): return [0] if sig == 33 else [0, 1]
    def creads(s):
        L = []
        def A(lv, rho):
            dl = 2 * (s + 16 * lv) + rho
            return [f"ds_read_b64 {vr(fA(s,lv,rho)+2*h,2)}, v4 offset:{2144 - 32*dl + 8*h}" for h in range(2)]
        L += A(0, 0)
        for k in range(4):
            L.append(f"ds_read_b128 {vr(fB(s)+4*k,4)}, v7 offset:{(16*k + 16 - s)*16}")
        L += A(0, 1) + A(1, 0) + A(1, 1)
        if 2 in levels(s):
            for rho in rhos(s + 32): L += A(2, rho)
        return L
    FRb, SRb = 144, 176
    FR = []
    for tau in range(4):
        for ti_, v0 in ((0, 32), (1, 0)):
            for h in range(2):
                FR.append(f"ds_read_b64 {vr(FRb+8*tau+4*ti_+2*h,2)}, v4 offset:{(140+8*tau)*16 + v0 + 8*h}")
    SR = []
    for tau in range(4):
        for rho in range(2):
            for h in range(2):
                off = (tau & 1) * S_LEN + 256 * h + 32 * rho + 64 - 16 * (tau + 1)
                SR.append(f"ds_read_b64_tr_b16 {vr(SRb+8*tau+4*rho+2*h,2)}, v8 offset:{off}")
    lg = LG(a)
    for x in creads(0): lg.rd(x)
    started = set()
    for s in range(16):
        nxtL = creads(s + 1) if s + 1 < 16 else []
        if 4 <= s < 12: nxtL = nxtL + FR[2*(s-4):2*(s-4)+2]
        if s == SBAR: a("s_barrier")
        if s >= 12: nxtL = nxtL + SR[4*(s-12):4*(s-12)+4]
        M = []
        for lv in levels(s):
            for rho in rhos(s + 16 * lv):
                for k in range(4 - lv):
                    ct = k + lv
                    c = vr(ACC(rho, ct), 4) if (rho, ct) in started else "0"
                    started.add((rho, ct))
                    M.append(f"v_mfma_f32_16x16x32_bf16 {vr(ACC(rho,ct),4)}, {vr(fA(s,lv,rho),4)}, {vr(fB(s)+4*k,4)}, {c}")
        k = 0
        nM = max(1, len(M) - CTAIL)
        for i, mf in enumerate(M):
            lg.need(mf)
            tgt = min(len(nxtL), (len(nxtL) * (i + 1) + nM - 1) // nM)
            while k < tgt: lg.rd(nxtL[k]); k += 1
        if s == 7:
            stamp(a)
            if STAMP and not LIGHT: lg.sync()
    for tau in range(4):
        for rho in range(2):
            for ct in (2, 3):
                lg.need(f"v_mfma_f32_16x16x32_bf16 {vr(ACC(rho,ct),4)}, {vr(SRb+8*tau+4*rho,4)}, {vr(FRb+8*tau+4*(ct-2),4)}, {vr(ACC(rho,ct),4)}")
    stamp(a)
    for ct in range(4):
        t = 64 + 4 * ct
        for rho in range(2):
            A = ACC(rho, ct)
            a(f"v_cvt_pk_bf16_f32 v{t+2*rho}, v{A}, v{A+1}")
            a(f"v_cvt_pk_bf16_f32 v{t+2*rho+1}, v{A+2}, v{A+3}")
    for ct in range(4):
        t = 64 + 4 * ct
        a(f"v_permlane16_swap_b32 v{t}, v{t+2}")
        a(f"v_permlane16_swap_b32 v{t+1}, v{t+3}")
        a(f"global_store_dwordx4 v9, {vr(t,4)}, s[34:35] offset:{1024*ct} sc1")
    a(f"""
    s_setprio 0
    s_lshr_b32 s9, s47, 2
    s_mul_i32 s9, s9, {ZS}
    s_and_b32 s10, s47, 3
    s_lshl_b32 s10, s10, 7
    s_add_u32 s9, s9, s10
    s_lshl_b32 s10, s11, 2
    s_add_u32 s9, s9, s10
    s_add_u32 s15, s9, {WS_Z + 2816}
    """)
    if SUBR:
        a("s_call_b64 s[100:101], L_setup")
        a("s_nop 0")
    a("s_waitcnt vmcnt(0)")
    store_flag(a, "s15", 22, 23)
    stamp(a)
    a("s_barrier")
    a("s_branch L_p2")
    a("L_s_help:")
    a(f"""
    s_waitcnt lgkmcnt(0)
    s_barrier
    """)
    stamp(a, 9)
    if TLBW:
        a(f"""
        v_and_b32 v232, 3, v1
        v_lshlrev_b32 v232, 21, v232
        v_add_u32 v232, 4096, v232
        v_cmp_eq_u32 vcc, 4096, v232
        v_cndmask_b32 v232, v232, 0, vcc
        v_min_u32 v232, {(4 << 20) + 32768}, v232
        v_or_b32 v233, 0x6000, v232
        v_cmp_lt_u32 vcc, {4 << 20}, v232
        v_cndmask_b32 v232, v232, v233, vcc
        global_load_dword v233, v232, s[34:35]
        s_lshl_b32 s9, s62, 15
        s_lshl_b32 s10, s63, 8
        s_add_u32 s9, s9, s10
        v_mov_b32 v234, s9
        global_load_dword v235, v234, s[30:31]
        v_mov_b32 v234, 0
        global_load_dword v236, v234, s[12:13]
        """)
    a("""
    v_and_b32 v202, 7, v1
    v_lshlrev_b32 v202, 2, v202
    global_load_dword v203, v202, s[32:33] sc1
    """)
    vm.issue("gate")
    a("""
    v_lshlrev_b32 v20, 4, v1
    v_add_u32 v21, s48, v20
    global_load_dwordx4 v[204:207], v20, s[28:29]
    global_load_dwordx4 v[208:211], v21, s[4:5]
    global_load_dwordx4 v[212:215], v21, s[4:5] offset:1024
    global_load_dwordx4 v[216:219], v21, s[4:5] offset:2048
    global_load_dwordx4 v[220:223], v21, s[4:5] offset:3072
    """)
    vm.issue("gx", 5)
    if PREW:
        lab = label("pw")
        for part in range(3):
            a(f"""
            s_lshr_b32 s9, s46, 2
            s_cmp_lg_u32 s9, {part}
            s_cbranch_scc1 {lab}_{part}
            """)
            for n in (10 + 2 * part, 11 + 2 * part): wo_item(a, VM(a), n, 8 + (n & 1))
            a(f"{lab}_{part}:")
    for n in range(4): wo_item(a, vm, n)
    for rnd in range(2):
        a(f"""
        s_mul_i32 s9, s11, {XPC}
        s_add_u32 s9, s9, {XP0}
        """)
        for j in range(3):
            a(f"""
            v_add_u32 v13, {62 + 64*rnd + j}, v1
            v_and_b32 v14, 3, v13
            v_mul_u32_u24 v14, {XPP}, v14
            v_lshrrev_b32 v13, 2, v13
            v_lshl_add_u32 v14, v13, 4, v14
            v_add_u32 v{24+j}, s9, v14
            """)
        a(f"""
        ds_read_b64 v[128:129], v24 offset:8
        ds_read_b128 v[130:133], v25
        ds_read_b64 v[134:135], v26
        s_mul_i32 s9, s11, {2*S_LEN}
        s_add_u32 s9, s9, {S0}
        v_lshlrev_b32 v27, 4, v1
        v_add_u32 v27, s9, v27
        s_waitcnt lgkmcnt(0)
        """)
        for k in range(8):
            a(f"v_lshlrev_b32 v{136+2*k}, 16, v{128+k}")
            a(f"v_and_b32 v{137+2*k}, 0xffff0000, v{128+k}")
        X = lambda i: 136 + 4 + i
        a(f"""
        v_add_f32 v152, v{X(-3)}, v{X(-2)}
        v_add_f32 v153, v{X(-1)}, v{X(0)}
        v_add_f32 v154, v{X(1)}, v{X(2)}
        v_add_f32 v152, v152, v{X(3)}
        v_add_f32 v153, v153, v154
        v_add_f32 v152, v152, v153
        """)
        for e in range(1, 8): a(f"v_sub_f32 v{160+e}, v{X(e+3)}, v{X(e-4)}")
        for e in range(8): a(f"v_add_f32 v{168+e}, v{X(e-4)}, v{X(e+4)}")
        for e in range(1, 8): a(f"v_add_f32 v{152+e}, v{152+e-1}, v{160+e}")
        for e in range(8): a(f"v_add_f32 v{168+e}, v{168+e}, v{152+e}")
        for k in range(4):
            a(f"v_cvt_pk_bf16_f32 v{176+k}, v{152+2*k}, v{153+2*k}")
            a(f"v_cvt_pk_bf16_f32 v{180+k}, v{168+2*k}, v{169+2*k}")
        a(f"""
        ds_write_b128 v27, v[176:179] offset:{48 + 1024*rnd}
        ds_write_b128 v27, v[180:183] offset:{S_LEN + 48 + 1024*rnd}
        """)
        if rnd == 1 and PREW: vm.wait("wo3")
        for n in range(4 + 3*rnd, 7 + 3*rnd): wo_item(a, vm, n)
    a(f"""
    v_mov_b32 v16, 0
    v_mov_b32 v17, 0
    v_mov_b32 v18, 0
    v_mov_b32 v19, 0
    s_mov_b64 exec, 7
    ds_write_b128 v27, v[16:19]
    ds_write_b128 v27, v[16:19] offset:{S_LEN}
    s_mov_b64 exec, -1
    """)
    vm.wait("gate")
    gate_verify(a, 203, 20, 21)
    a("s_waitcnt lgkmcnt(0)")
    stamp(a)
    a("s_barrier")
    vm.wait("gx")
    for t in range(4): a(f"v_mov_b32 v{224+t}, 0")
    for jj in range(4):
        for t in range(4):
            a(f"v_dot2_f32_bf16 v{224+t}, v{208+4*t+jj}, v{204+jj}, v{224+t}")
    for mod in ("row_shr:1", "row_shr:2", "row_shr:4", "row_shr:8"):
        for t in range(4):
            a(f"v_add_f32_dpp v{224+t}, v{224+t}, v{224+t} {mod} row_mask:0xf bank_mask:0xf bound_ctrl:0")
    for mod in ("row_bcast:15 row_mask:0xa", "row_bcast:31 row_mask:0xc"):
        for t in range(4):
            a(f"v_add_f32_dpp v{224+t}, v{224+t}, v{224+t} {mod} bank_mask:0xf")
    for t in range(4): a(f"v_mul_f32 v{224+t}, {f32(-LOG2E)}, v{224+t}")
    for t in range(4): a(f"v_exp_f32 v{224+t}, v{224+t}")
    for t in range(4): a(f"v_add_f32 v{224+t}, 1.0, v{224+t}")
    for t in range(4): a(f"v_rcp_f32 v{224+t}, v{224+t}")
    for t in range(4): a(f"v_or_b32 v{224+t}, 1, v{224+t}")
    a(f"""
    s_lshr_b32 s9, s47, 2
    s_mul_i32 s9, s9, {ZS}
    s_lshr_b32 s10, s48, 8
    s_and_b32 s10, s10, 0xf0
    s_add_u32 s9, s9, s10
    s_add_u32 s9, s9, {WS_Z + 2560}
    v_mov_b32 v20, s9
    s_mov_b32 exec_lo, 0
    s_mov_b32 exec_hi, 0x80000000
    global_store_dwordx4 v20, v[224:227], s[34:35] sc1
    s_mov_b64 exec, -1
    """)
    a("v_add_u32 v238, 0x10000, v238")
    stamp(a)
    if SUBR:
        a("s_call_b64 s[100:101], L_setup")
        a("s_nop 0")
    a("s_barrier")
    for n in range(10, 16): wo_item(a, vm, n)
    a("s_branch L_p2w")

AUX = 131072
KVI = 16384
def gen_phase2(a):
    a("L_setup:" if SUBR else "L_p2w:\nL_p2:")
    a(f"""
    v_lshlrev_b32 v3, 4, v1
    s_and_b32 s47, s44, 3                    ; cb
    s_lshr_b32 s48, s44, 2                   ; kh
    v_lshrrev_b32 v12, 5, v1                 ; g
    v_and_b32 v11, 31, v1
    s_mul_i32 s9, s44, {4*ZS}
    s_add_u32 s9, s9, {WS_Z}
    v_add_u32 v4, s9, v3
    v_add_u32 v2, {2*ZS}, v4
    v_bfe_u32 v13, v1, 2, 2
    v_mul_u32_u24 v7, {ZS}, v13
    v_and_b32 v14, 3, v1
    v_lshl_add_u32 v7, v14, 4, v7
    v_add_u32 v7, s9, v7
    v_mul_u32_u24 v8, 576, v13
    v_lshl_add_u32 v8, v14, 3, v8
    s_lshl_b32 s50, s44, 12
    s_add_u32 s50, s50, {AUX}
    v_add_u32 v8, s50, v8
    v_lshlrev_b32 v17, 3, v1
    v_add_u32 v17, s50, v17
    v_min_u32 v13, 16, v11
    v_lshlrev_b32 v13, 5, v13
    v_lshl_add_u32 v13, v12, 4, v13
    v_add_u32 v18, s50, v13
    v_max_u32 v13, 15, v11
    v_subrev_u32 v13, 15, v13
    v_lshlrev_b32 v13, 5, v13
    v_lshl_add_u32 v13, v12, 4, v13
    v_add_u32 v19, s50, v13
    v_lshrrev_b32 v13, 4, v1
    v_mul_u32_u24 v13, {ZS}, v13
    v_bfe_u32 v14, v1, 2, 2
    v_lshl_add_u32 v13, v14, 7, v13
    v_and_b32 v14, 3, v1
    v_lshl_add_u32 v13, v14, 2, v13
    v_add_u32 v13, s9, v13
    v_add_u32 v9, 3328, v13
    s_lshr_b32 s9, s62, 1
    s_mul_i32 s9, s9, {ZS}
    s_lshl_b32 s10, s44, 7
    s_add_u32 s9, s9, s10
    s_add_u32 s9, s9, {WS_Z + 1536}
    v_and_b32 v14, 1, v1
    v_lshlrev_b32 v14, 2, v14
    v_add_u32 v10, s9, v14
    s_lshl_b32 s9, s63, 3
    s_lshl_b32 s10, s47, 1
    s_add_u32 s9, s9, s10
    s_add_u32 s9, s9, s48
    s_mul_i32 s9, s9, {ZS}
    s_add_u32 s9, s9, {WS_Z + 2816}
    v_bfe_u32 v13, v1, 2, 2
    v_lshlrev_b32 v13, 7, v13
    v_and_b32 v14, 3, v1
    v_lshl_add_u32 v13, v14, 2, v13
    v_add_u32 v105, s9, v13
    s_lshl_b32 s9, s62, 5
    s_lshl_b32 s10, s44, 2
    s_add_u32 s9, s9, s10
    s_lshl_b32 s9, s9, 10
    s_add_u32 s9, s9, {WS_PQ}
    v_add_u32 v5, s9, v3
    s_lshl_b32 s9, s63, 7
    s_lshl_b32 s10, s47, 5
    s_add_u32 s9, s9, s10
    s_lshl_b32 s10, s48, 4
    s_add_u32 s9, s9, s10
    s_lshl_b32 s9, s9, 12
    s_lshl_b32 s10, s62, 6
    s_add_u32 s9, s9, s10
    s_add_u32 s49, s9, {WS_BG}
    v_lshlrev_b32 v13, 14, v12
    v_lshl_add_u32 v6, v11, 1, v13           ; b voffset
    s_lshr_b32 s9, s62, 1
    s_mul_i32 s9, s9, {ZS}
    s_and_b32 s10, s62, 1
    s_lshl_b32 s10, s10, 7
    s_add_u32 s9, s9, s10
    s_add_u32 s9, s9, {WS_Z + 2560}
    v_lshlrev_b32 v13, 2, v11
    v_add_u32 v15, s9, v13                   ; g
    s_lshl_b32 s9, s62, 15
    s_lshl_b32 s10, s63, 8
    s_add_u32 s9, s9, s10
    s_lshl_b32 s10, s47, 6
    s_add_u32 s9, s9, s10
    s_lshl_b32 s10, s48, 5
    s_add_u32 s9, s9, s10
    v_lshlrev_b32 v13, 10, v11
    v_lshl_add_u32 v13, v12, 4, v13
    v_add_u32 v16, s9, v13                   ; out
    s_lshl_b32 s9, s44, 12
    s_add_u32 s9, s9, {AUX}
    v_add_u32 v13, s9, v3
    s_lshl_b32 s9, s48, 14
    s_add_u32 s9, s9, {AUX}
    v_add_u32 v14, s9, v3
    s_mov_b32 s54, {f32(1e-6)}
    """)
    srd(a, 36, 34, 6 << 20)
    if SUBR:
        a("""
        s_setpc_b64 s[100:101]
        L_p2w:
        s_waitcnt vmcnt(0)
        L_p2:
        """)
    else: a("s_waitcnt vmcnt(0)")
    stamp(a, 13)
    def bloads():
        for k in range(8):
            a(f"s_add_u32 s9, s49, {(8*(k>>2) + (k&3))*4096}")
            a(f"buffer_load_ushort v{96+k}, v6, s[36:39], s9 offen sc1")
    lp, lq, l1, l2 = label("pp"), label("pq"), label("p1"), label("p2")
    KVGATE = f"s_bitcmp1_b32 s55, 0\n    s_cbranch_scc1 {l2}b" if KVAFTER else ""
    if POLLAFTER: a("s_barrier")
    a("""
    global_load_dword v21, v9, s[34:35] sc1
    global_load_dword v20, v10, s[34:35] sc1
    """)
    if not POLLAFTER: a("s_barrier")
    wo_frag_reads(a, 238)
    stamp(a)
    a(f"""
    s_mov_b32 s10, 0
    s_mov_b32 s55, 3
    {lp}:
    s_waitcnt vmcnt(0)
    s_add_u32 s10, s10, 1
    s_cmp_gt_u32 s10, {SPIN_MAX}
    s_cselect_b64 s[58:59], 0, -1
    s_bitcmp0_b32 s55, 1
    s_cbranch_scc1 {l1}
    v_cmp_ne_u32 vcc, 1, v21
    s_and_b64 vcc, vcc, s[58:59]
    s_cbranch_scc1 {l1}
    s_and_b32 s55, s55, 1
    s_mov_b32 s57, s55
    global_load_dwordx4 v[32:35], v4, s[34:35] sc1
    global_load_dwordx4 v[36:39], v4, s[34:35] offset:{ZS} sc1
    global_load_dwordx4 v[40:43], v2, s[34:35] sc1
    global_load_dwordx4 v[44:47], v2, s[34:35] offset:{ZS} sc1
    global_load_dwordx4 v[48:51], v7, s[34:35] offset:1024 sc1
    {l1}:
    s_bitcmp0_b32 s55, 0
    s_cbranch_scc1 {l2}
    v_cmp_ne_u32 vcc, 1, v20
    s_and_b64 vcc, vcc, s[58:59]
    s_cbranch_scc1 {l2}
    s_and_b32 s55, s55, 2
    """)
    for j in range(4):
        a(f"global_load_dwordx4 {vr(80+4*j,4)}, v5, s[34:35] offset:{1024*j} sc1")
    a(f"""
    {l2}:
    s_cmp_eq_u32 s55, 0
    s_cbranch_scc1 {lq}
    s_sleep {PSLEEP}
    s_bitcmp0_b32 s55, 1
    s_cbranch_scc1 {l2}b
    {KVGATE}
    v_cmp_ne_u32 vcc, 1, v21
    s_mov_b64 exec, vcc
    global_load_dword v21, v9, s[34:35] sc1
    s_mov_b64 exec, -1
    {l2}b:
    s_bitcmp0_b32 s55, 0
    s_cbranch_scc1 {lp}
    global_load_dword v20, v10, s[34:35] sc1
    s_branch {lp}
    {lq}:
    global_load_dword v106, v105, s[34:35] sc1
    global_load_dword v104, v15, s[34:35] sc1
    """)
    stamp(a)
    if FINEW:
        lw = label("fw")
        a(f"""
        s_waitcnt vmcnt(6)
        s_cmp_eq_u32 s57, 1
        s_cbranch_scc1 {lw}
        s_waitcnt vmcnt(2)
        {lw}:
        """)
    else: a("s_waitcnt vmcnt(2)")
    for i in range(5):
        a(f"v_cvt_pk_bf16_f32 v{52+2*i}, v{32+4*i}, v{33+4*i}")
        a(f"v_cvt_pk_bf16_f32 v{53+2*i}, v{34+4*i}, v{35+4*i}")
        if i < 4: a(f"ds_write_b64 v17, {vr(52+2*i,2)} offset:{576*i}")
        else: a(f"ds_write_b64 v8, {vr(52+2*i,2)} offset:512")
    a("s_waitcnt lgkmcnt(0)")
    for j in range(4):
        a(f"ds_read_b128 {vr(64+4*j,4)}, v{18 + (j & 1)} offset:{576*j}")
    stamp(a)
    if STAMP: a("s_mov_b32 s90, s10")
    for j in range(4):
        a(f"s_waitcnt vmcnt({5-j}) lgkmcnt({3-j})" if FINEW else f"s_waitcnt lgkmcnt({3-j})")
        a(f"v_mfma_f32_32x32x16_bf16 {vr(192+16*j,16)}, {vr(64+4*j,4)}, {vr(80+4*j,4)}, 0")
    def bcheck():
        lb0, lb1 = label("b"), label("b")
        a(f"""
        s_mov_b32 s10, 0
        s_waitcnt vmcnt(0)
        {lb0}:
        v_min_u32 v20, v104, v106
        v_cmp_eq_u32 vcc, 0, v20
        s_add_u32 s10, s10, 1
        s_cmp_gt_u32 s10, {SPIN_MAX}
        s_cbranch_scc1 {lb1}
        s_cbranch_vccz {lb1}
        s_sleep {PSLEEP}
        global_load_dword v106, v105, s[34:35] sc1
        global_load_dword v104, v15, s[34:35] sc1
        s_waitcnt vmcnt(0)
        s_branch {lb0}
        {lb1}:
        """)
        bloads()
    if BEARLY: bcheck()
    for j in range(4):
        D = 192 + 16 * j
        N, Dn = (D, D + 8) if j % 2 == 0 else (D + 8, D)
        a(f"v_add_f32 v{Dn}, s54, v{Dn}")
        a(f"v_rcp_f32 v{Dn}, v{Dn}")
        for r in range(8): a(f"v_mul_f32 v{N+r}, v{Dn}, v{N+r}")
        for k in range(4): a(f"v_cvt_pk_bf16_f32 v{Dn+4+k}, v{N+2*k}, v{N+2*k+1}")
        a(f"ds_write_b128 v13, {vr(Dn+4,4)} offset:{1024*j}")
    a("""
    s_waitcnt lgkmcnt(0)
    s_barrier
    """)
    stamp(a)
    def s2reads(j):
        a(f"ds_read_b128 {vr(192+4*j,4)}, v14 offset:{1024*j}")
    for j in range(8): s2reads(j)
    if not BEARLY and BAT < 0: bcheck()
    for j in range(16):
        a(f"s_waitcnt lgkmcnt({min(7, 15-j)})")
        c = "0" if j == 0 else vr(32, 16)
        a(f"v_mfma_f32_32x32x16_bf16 {vr(32,16)}, {vr(128+4*j,4)}, {vr(192+4*j,4)}, {c}")
        if j + 8 < 16: s2reads(j + 8)
        if j == BAT: bcheck()
    stamp(a)
    le0, le1 = label("e"), label("e")
    a(f"""
    s_lshl_b32 s9, s44, 11
    v_add_u32 v13, s9, v3
    s_xor_b32 s9, s9, {4 << 11}
    v_add_u32 v14, s9, v3
    s_waitcnt vmcnt(0)
    """)
    for k in range(8):
        a(f"v_lshlrev_b32 v{72+k}, 16, v{96+k}")
    a(f"""
    s_cmp_eq_u32 s48, 0
    s_cbranch_scc1 {le0}
    ds_write_b128 v13, v[32:35]
    ds_write_b128 v13, v[36:39] offset:1024
    """)
    for r in range(8): a(f"v_mov_b32 v{32+r}, v{40+r}")
    a(f"""
    s_branch {le1}
    {le0}:
    ds_write_b128 v13, v[40:43]
    ds_write_b128 v13, v[44:47] offset:1024
    {le1}:
    """)
    for r in range(8): a(f"v_sub_f32 v{32+r}, v{32+r}, v{72+r}")
    a("""
    s_waitcnt lgkmcnt(0)
    s_barrier
    ds_read_b128 v[64:67], v14
    ds_read_b128 v[68:71], v14 offset:1024
    s_waitcnt lgkmcnt(0)
    """)
    for r in range(8): a(f"v_add_f32 v{32+r}, v{32+r}, v{64+r}")
    for r in range(8): a(f"v_fmac_f32 v{72+r}, v104, v{32+r}")
    for k in range(4): a(f"v_cvt_pk_bf16_f32 v{80+k}, v{72+2*k}, v{73+2*k}")
    a("""
    v_permlane32_swap_b32 v80, v82
    v_permlane32_swap_b32 v81, v83
    global_store_dwordx4 v16, v[80:83], s[30:31]
    """)
    stamp(a)
    stamp_end(a)

GSTEP = (1, 4)
PSLEEP = 4
NLA = 8
CNT1 = False
DYNP = True
BFLAG1 = True
WO_A1 = (0, 1)
WO_THR = None
PADN = 64
RBIT = 7
BEARLY = False
SUBR = True
ROTM = 2
TLBW = True
PREW = True
ILV = False
FINEW = True
BAT = 6
KVAFTER = False
POLLAFTER = True
WO_A2 = (2, 3, 4, 5, 6)
PRIO_A = 0
PRIO_B = 1
PRIO_C = 2
WARM = 1
KVPOLL = 0xffff
QS = 1
MF_FIRST = False
RPM = 2
P2F = (24, 36, 64, 76)
P2D = 3
LA = 3
XLA = 4
XFIRST = False
BWPOS = 3
PRIO_B1 = 1
THIN = {1: [0], 2: [1], 3: [2], 4: [3], 5: [4], 6: [5], 7: [6], 8: [7]}
Q7BLK = 1
XB = 2
WO_EARLY = (0, 4, 5, 6, 7)
WO_LATE = (1, 4, 5, 6, 7, 8, 9, 10, 11, 12, 13, 14, 15)
APK = False
WO_N1 = 8
SBAR = 11
SBAR2 = 12
ESPLIT = 0.7
CTAIL = 6

def kd(name, nv, ns):
    return f"""
.p2align 6
.amdhsa_kernel {name}
  .amdhsa_next_free_vgpr {nv}
  .amdhsa_next_free_sgpr {ns}
  .amdhsa_accum_offset {(nv + 3) // 4 * 4}
  .amdhsa_group_segment_fixed_size 0
  .amdhsa_kernarg_size 112
  .amdhsa_user_sgpr_count 2
  .amdhsa_user_sgpr_kernarg_segment_ptr 1
  .amdhsa_system_sgpr_workgroup_id_x 1
  .amdhsa_float_denorm_mode_32 3
.end_amdhsa_kernel
"""

def main(path):
    hdr = open("cdna_kernels/" + NAME + ".s.ref").read().split("; Override launch")[0]
    a = Asm()
    gen_k1(a)
    body = a.finalize()
    if WARM == 2:
        lines = body.split("\n")
        out_l, cnt, npad = [], 0, 0
        started = False
        for ln in lines:
            if ln.strip() == "L_gemm:": started = True
            st = ln.strip()
            is_ins = ln.startswith("    ") and st and not st.startswith((";", "."))
            if started and is_ins:
                cnt += 1
                if cnt >= PADN and npad < 64:
                    out_l.append(f"LPAD_{npad}:")
                    out_l.append("    s_cbranch_execz L_wret")
                    npad += 1; cnt = 0
            out_l.append(ln)
        disp = ["L_wdisp:"]
        for i in range(npad):
            disp.append(f"    s_cmp_eq_u32 s9, {i}")
            disp.append(f"    s_cbranch_scc1 LPAD_{i}")
        disp.append("    s_branch L_wret")
        body = "\n".join(out_l).replace("@WDISP@", "\n".join(disp))
        print("pads:", npad)
    out = hdr
    out += f"; @launch grid=(256,1,1) block=(512,1,1) lds={LDS}\n"
    out += """;
"""
    out += '.amdgcn_target "amdgcn-amd-amdhsa--gfx950"\n.text\n'
    out += body
    out += '.section .rodata,"a"\n' + kd(K1, 256, 102)
    open(path, "w").write(out)
    print("auto nop states:", a.auto_nop_states)

if __name__ == "__main__":
    args = []
    for x in sys.argv[1:]:
        if x == "--stamp": STAMP = True
        elif x == "--rt": STAMP = True; STI = "s_memrealtime"
        elif x.startswith("--") and "=" in x:
            k, v = x[2:].split("=")
            globals()[k] = eval(v)
        else: args.append(x)
    main(args[0] if args else "cdna_kernels/" + NAME + ".s")
```

```python
import sys, struct
from asmlib import Asm

def f32(x):
    return "0x%08x" % struct.unpack("<I", struct.pack("<f", x))[0]

NAME = "gated_mix__linear_attn_block__ssm_conv_s4d__prompt"
K1 = NAME + "_kernel"

WS_PQ = 4096
WS_BG = (2 << 20) + 8192
WS_Z = (4 << 20) + 65536
ZS = 3840
WS_ST = 6 << 20

LOG2E = 1.4426950408889634
L2E_HI = struct.unpack("<f", struct.pack("<I", 0x3FB8AA00))[0]
L2E_LO = LOG2E - L2E_HI
LDS = 163840
SPIN_MAX = 0x4000
OPT = {}

STAMP = False
STI = "s_memtime"
_st = {"n": 0}
LIGHT = False
def stamp(a, at=None):
    if not STAMP or LIGHT: return
    if at is not None: _st["n"] = at
    n = _st["n"]; _st["n"] += 1
    assert n < 21, n
    a(f"""
    {STI} s[66:67]
    s_waitcnt lgkmcnt(0)
    s_mov_b32 s{70+n}, s66
    """)
def stamp_end(a):
    if not STAMP: return
    a(f"""
    s_waitcnt vmcnt(0)
    {STI} s[66:67]
    s_memrealtime s[64:65]
    s_waitcnt lgkmcnt(0)
    s_mov_b32 s91, s66
    s_mov_b64 exec, 1
    s_lshl_b32 s9, s2, 3
    s_add_u32 s9, s9, s44
    s_lshl_b32 s9, s9, 7
    s_add_u32 s9, s9, {WS_ST}
    v_mov_b32 v10, s9
    """)
    for q in range(6):
        src = [70+4*q+i for i in range(4)]
        if q == 5: src = [90, 91, 68, 64]
        for i in range(4): a(f"v_mov_b32 v{12+i}, s{src[i]}")
        a(f"global_store_dwordx4 v10, v[12:15], s[34:35] offset:{16*q}")
        a("s_nop 1")

def vr(b, n):
    return f"v[{b}:{b+n-1}]" if n > 1 else f"v{b}"

def srd(a, d, base, nbytes):
    a(f"""
    s_mov_b32 s{d}, s{base}
    s_and_b32 s{d+1}, s{base+1}, 0xffff
    s_mov_b32 s{d+2}, {nbytes}
    s_mov_b32 s{d+3}, 0x00020000
    """)

_lbl = [0]
def label(p):
    _lbl[0] += 1
    return f"L{p}_{_lbl[0]}"

class VM:
    def __init__(self, a): self.a = a; self.ops = []
    def issue(self, tag, n=1): self.ops += [tag] * n
    def has(self, tags): return any(t in tags for t in self.ops)
    def wait(self, tags, extra=""):
        if isinstance(tags, str): tags = [tags]
        last = max(i for i, t in enumerate(self.ops) if t in tags)
        n = len(self.ops) - 1 - last
        assert n <= 63
        self.a(f"s_waitcnt vmcnt({n}) {extra}".strip())

class LG:
    def __init__(self, a): self.a = a; self.ops = []; self.done = 0
    def rd(self, ins):
        from asmlib import Ins
        self.a(ins); self.ops.append(Ins(ins).wr)
    def need(self, ins):
        from asmlib import Ins
        rd = Ins(ins).rd
        last = -1
        for i in range(self.done, len(self.ops)):
            if self.ops[i] & rd: last = i
        if last >= 0:
            n = min(15, len(self.ops) - 1 - last)
            self.a(f"s_waitcnt lgkmcnt({n})")
            self.done = len(self.ops) - n
        self.a(ins)
    def sync(self): self.done = len(self.ops)

def flags_check(a, vt0, vt1):
    l0, l1 = label("g"), label("g")
    a(f"""
    v_and_b32 v{vt0}, 7, v1
    v_lshlrev_b32 v{vt0}, 2, v{vt0}
    s_mov_b32 s10, 0
    s_mov_b32 s9, 0x01010101
    {l0}:
    global_load_dword v{vt1}, v{vt0}, s[32:33] sc1
    s_add_u32 s10, s10, 1
    s_waitcnt vmcnt(0)
    v_cmp_ne_u32 vcc, s9, v{vt1}
    s_cmp_gt_u32 s10, {SPIN_MAX}
    s_cbranch_scc1 {l1}
    s_cbranch_vccz {l1}
    s_sleep 8
    s_branch {l0}
    {l1}:
    """)

def gate_verify(a, vloaded, vt0, vt1):
    lg = label("gk")
    a(f"""
    s_mov_b32 s9, 0x01010101
    v_cmp_ne_u32 vcc, s9, v{vloaded}
    s_cbranch_vccz {lg}
    """)
    flags_check(a, vt0, vt1)
    a(f"{lg}:")

def store_flag(a, saddr, vt0, vt1):
    a(f"""
    v_mov_b32 v{vt0}, {saddr}
    v_mov_b32 v{vt1}, 1
    s_mov_b64 exec, 1
    global_store_dword v{vt0}, v{vt1}, s[34:35] sc1
    s_mov_b64 exec, -1
    """)

def poison_test(a, regs, vt):
    regs = list(regs)
    a(f"v_max3_u32 v{vt}, v{regs[0]}, v{regs[1]}, v{regs[2]}" if len(regs) >= 3 else f"v_max_u32 v{vt}, v{regs[0]}, v{regs[1]}")
    rest = regs[3:] if len(regs) >= 3 else []
    while len(rest) >= 2:
        a(f"v_max3_u32 v{vt}, v{vt}, v{rest[0]}, v{rest[1]}"); rest = rest[2:]
    if rest: a(f"v_max_u32 v{vt}, v{vt}, v{rest[0]}")
    a(f"v_cmp_eq_u32 vcc, -1, v{vt}")

RING = 131072

def gen_k1(a):
    global WO_LATE
    early = [n for v in WOE.values() for n in v]
    WO_LATE = tuple(n for n in range(16) if n not in early and n not in (XB, XB + 1))
    SUBEXP = "s_lshr_b32 s46, s2, 4" if RBIT == 3 else "s_bfe_u32 s46, s2, 0x40003"
    a(f"""
    .globl {K1}
    .p2align 8
    .type {K1},@function
    {K1}:
    s_cmp_ge_u32 s2, 256
    s_cbranch_scc1 L_end
    s_load_dwordx4 s[4:7], s[0:1], 0
    s_load_dwordx16 s[16:31], s[0:1], 32
    s_load_dwordx4 s[32:35], s[0:1], 96
    s_load_dwordx2 s[12:13], s[0:1], 16
    """)
    if STAMP:
        a(f"""
        s_memrealtime s[68:69]
        {STI} s[70:71]
        """)
    a(f"""
    v_lshrrev_b32 v2, 6, v0
    v_and_b32 v1, 63, v0
    v_readfirstlane_b32 s44, v2
    s_and_b32 s45, s2, 7
    {SUBEXP}
    """)
    if WARM == 2:
        a(f"""
        s_lshr_b32 s9, s2, 3
        s_lshl_b32 s9, s9, 3
        s_add_u32 s9, s9, s44
        s_and_b32 s9, s9, 63
        s_mov_b64 exec, 0
        s_branch L_wdisp
        L_wret:
        s_mov_b64 exec, -1
        """)
    if WARM == 1:
        a(f"""
        s_getpc_b64 s[100:101]
        s_and_b32 s100, s100, 0xffffff00
        v_lshlrev_b32 v3, 4, v0
        s_and_b32 s9, s46, 3
        s_lshl_b32 s9, s9, 13
        v_add_u32 v3, s9, v3
        v_min_u32 v3, CODE_END - {K1} - 16, v3
        v_mov_b32 v5, s101
        v_add_co_u32 v4, vcc, s100, v3
        v_addc_co_u32 v5, vcc, 0, v5, vcc
        global_load_dwordx4 v[228:231], v[4:5], off
        """)
    a(f"""
    v_lshrrev_b32 v254, 3, v1
    v_and_b32 v11, 7, v1
    s_and_b32 s11, s44, 3
    s_lshl_b32 s97, s11, 11              ; L*2048
    s_bitcmp1_b32 s2, {RBIT}
    s_cbranch_scc0 L_gemm
    """)
    ssm_first(a)
    if WARM == 2: a.raw("@WDISP@")
    a("L_gemm:")
    gemm_first(a)
    gen_gemm_B(a)
    gen_gemm_A(a)
    gen_ssm(a)
    gen_phase2(a)
    a("""
    L_end:
    s_endpgm
    CODE_END:
    """)

def common_late(a):
    a(f"""
    s_and_b32 s63, s46, 3                ; cq
    s_lshr_b32 s62, s46, 2
    s_lshl_b32 s62, s62, 1
    s_bfe_u32 s9, s2, {0x10000 + RBIT}
    s_add_u32 s62, s62, s9
    s_lshl_b32 s9, s45, 3
    s_add_u32 s62, s62, s9               ; tt
    v_lshrrev_b32 v255, 2, v1
    v_and_b32 v255, 4, v255
    v_and_b32 v253, 7, v1
    v_xor_b32 v255, v255, v253
    v_lshlrev_b32 v255, 4, v255
    v_lshl_add_u32 v253, v254, 10, v255
    v_lshrrev_b32 v255, 5, v1
    v_bfe_u32 v237, v1, 2, 2
    v_lshl_add_u32 v238, v255, 2, v237
    v_lshlrev_b32 v238, 7, v238
    v_lshrrev_b32 v237, 1, v237
    s_and_b32 s9, s11, 1
    v_xor_b32 v237, s9, v237
    v_lshl_add_u32 v238, v237, 6, v238
    v_bfe_u32 v237, v1, 4, 1
    v_lshl_add_u32 v238, v237, 5, v238
    v_and_b32 v237, 3, v1
    v_lshl_add_u32 v238, v237, 3, v238
    s_lshr_b32 s9, s11, 1
    s_lshl_b32 s9, s9, 15
    v_add_u32 v238, s9, v238
    s_mov_b32 s14, 0
    s_lshl_b32 s96, s11, 14              ; L*16 rows*1024
    s_lshl_b32 s9, s63, 8
    s_add_u32 s96, s96, s9
    """)
    srd(a, 92, 12, 512 * 512 * 2)
    if STAMP:
        for i in range(1, 22): a(f"s_mov_b32 s{70+i}, 0")

def wo_item(a, vm, n, blk=None):
    if blk is None: blk = n
    a(f"""
    s_add_u32 m0, s97, {blk*8192}
    s_add_u32 s9, s96, {((n >> 3)*256 + (n & 3)*64)*1024 + ((n >> 2) & 1)*128}
    buffer_load_dwordx4 v253, s[92:95], s9 offen lds
    s_add_u32 m0, s97, {blk*8192 + 1024}
    s_add_u32 s9, s9, 8192
    buffer_load_dwordx4 v253, s[92:95], s9 offen lds
    """)
    vm.issue(f"wo{n}", 2)

def wo_frag_reads(a, vaddr):
    for j in range(16):
        for h2 in range(2):
            a(f"ds_read_b64_tr_b16 {vr(128+4*j+2*h2,2)}, v{vaddr} offset:{2048*j + 1024*h2}")

def wloc(u):
    if u == 23: return Q7BLK * 8192
    if u < 16 or u >= 20: return RING + (u % 4) * 8192
    return (12 + u - 16) * 8192

def phi_list(src, dst, tmp, packed=True):
    fronts, backs = [], []
    for p in range(8):
        r = src + 2 * p
        t = tmp + 2 * (p % 4)
        if packed:
            fronts.append([f"v_pk_fma_f32 {vr(t,2)}, {vr(r,2)}, s[56:57], v[18:19]"])
            add = [f"v_pk_add_f32 {vr(r,2)}, {vr(r,2)}, s[58:59]"]
        else:
            fronts.append([f"v_fma_f32 v{t}, v{r}, s56, v18", f"v_fma_f32 v{t+1}, v{r+1}, s56, v18"])
            add = [f"v_add_f32 v{r}, s58, v{r}", f"v_add_f32 v{r+1}, s58, v{r+1}"]
        backs.append(([f"v_exp_f32_e64 v{t}, v{t} clamp", f"v_exp_f32_e64 v{t+1}, v{t+1} clamp"],
                      [f"v_max_f32 v{r}, v{r}, v{t}", f"v_max_f32 v{r+1}, v{r+1}, v{t+1}"],
                      add,
                      [f"v_cvt_pk_bf16_f32 v{dst+p}, v{r}, v{r+1}"]))
    out = []
    for step in range(8 + 4):
        if step < 8: out += fronts[step]
        for stage in range(4):
            p = step - 1 - stage
            if 0 <= p < 8: out += backs[p][stage]
    return out

def phi_consts(a):
    a(f"""
    s_mov_b32 s56, {f32(LOG2E)}
    s_mov_b32 s57, {f32(LOG2E)}
    s_mov_b32 s58, {f32(1e-6)}
    s_mov_b32 s59, {f32(1e-6)}
    v_mov_b32 v18, {f32(-LOG2E)}
    v_mov_b32 v19, {f32(-LOG2E)}
    """)

class GemmDma:
    def __init__(self, a): self.a = a; self.vm = VM(a)
    def st_of(self, i):
        self.a(f"""
        s_add_u32 s53, s49, {i}
        s_and_b32 s53, s53, 7
        """)
    def x_item(self, x):
        i, half = x >> 1, x & 1
        self.st_of(i)
        self.a(f"""
        s_lshl_b32 s54, s53, 7
        s_add_u32 s54, s54, s50
        s_add_u32 m0, s97, {x*8192}
        s_add_u32 s54, s54, {half*65536}
        buffer_load_dwordx4 v2, s[36:39], s54 offen lds
        s_add_u32 m0, s97, {x*8192 + 1024}
        s_add_u32 s54, s54, 8192
        buffer_load_dwordx4 v3, s[36:39], s54 offen lds
        """)
        self.vm.issue(f"x{x}", 2)
    def w_item(self, u):
        if u < 16:
            self.st_of(u >> 1)
            base, extra = "s51", (u & 1) * 32 * 3072
        else:
            self.st_of(u - 16)
            base, extra = "s52", 0
        self.a(f"""
        s_mul_i32 s55, s53, {64*3072}
        s_add_u32 s55, s55, {base}
        s_add_u32 m0, s97, {wloc(u)}
        s_add_u32 s55, s55, {extra}
        buffer_load_dwordx4 v252, s[40:43], s55 offen lds
        s_add_u32 m0, s97, {wloc(u) + 1024}
        s_add_u32 s55, s55, {8*3072}
        buffer_load_dwordx4 v252, s[40:43], s55 offen lds
        """)
        self.vm.issue(f"w{u}", 2)

GB = {}
def gemm_first(a):
    ROT = {0: "", 1: "s_add_u32 s49, s49, s45", 2: "s_lshr_b32 s9, s45, 1\n    s_xor_b32 s9, s9, s45\n    s_and_b32 s9, s9, 1\n    s_add_u32 s49, s49, s9", 3: "s_mov_b32 s49, 0"}[ROTM]
    a(f"""
    s_lshr_b32 s47, s45, 1
    s_lshl_b32 s47, s47, 2
    s_lshr_b32 s3, s46, 2
    s_add_u32 s47, s47, s3
    s_and_b32 s48, s45, 1
    s_lshl_b32 s48, s48, 2
    s_and_b32 s8, s46, 3
    s_add_u32 s48, s48, s8
    s_add_u32 s49, s3, s8
    s_lshl_b32 s49, s49, 1
    {ROT}
    s_and_b32 s49, s49, 7
    v_lshrrev_b32 v10, 2, v1
    v_and_b32 v10, 4, v10
    v_xor_b32 v10, v10, v11
    v_lshlrev_b32 v10, 4, v10
    v_mul_u32_u24 v252, 3072, v254
    v_add_u32 v252, v252, v10
    s_lshl_b32 s9, s48, 7
    s_mul_i32 s52, s11, {16*3072}
    s_add_u32 s52, s52, s9
    s_cmp_lt_u32 s44, 4
    s_cbranch_scc1 L_gA
    v_lshrrev_b32 v10, 4, v1
    v_xor_b32 v10, v10, v11
    v_lshlrev_b32 v10, 4, v10
    v_lshl_add_u32 v2, v254, 10, v10
    v_xor_b32 v3, 64, v2
    s_lshl_b32 s50, s47, 17
    s_lshl_b32 s10, s11, 14
    s_add_u32 s50, s50, s10
    s_lshr_b32 s10, s11, 1
    s_add_u32 s10, s10, 1
    s_lshl_b32 s51, s10, 10
    s_add_u32 s51, s51, s9
    s_and_b32 s10, s11, 1
    s_mul_i32 s10, s10, {16*3072}
    s_add_u32 s51, s51, s10
    s_mov_b32 s38, {2 << 20}
    s_mov_b32 s39, 0x00020000
    s_mov_b32 s42, {512 * 1536 * 2}
    s_mov_b32 s43, 0x00020000
    s_waitcnt lgkmcnt(0)
    s_mov_b32 s36, s4
    s_and_b32 s37, s5, 0xffff
    s_mov_b32 s40, s6
    s_and_b32 s41, s7, 0xffff
    """)
    D = GemmDma(a)
    GB["D"] = D
    D.x_item(0); D.x_item(1); D.w_item(0); D.w_item(1); D.w_item(16)

steps = []
for u in range(16): steps += [(u, 0, 2), (u, 1, 2)]
for u in range(16, 24): steps += [(u, k, 4) for k in range(4)]

def frag_addrs(a):
    a(f"""
    v_and_b32 v20, 31, v1
    v_lshrrev_b32 v21, 5, v1
    v_bfe_u32 v22, v1, 1, 3
    v_xor_b32 v22, v22, v21
    s_and_b32 s9, s44, 1
    s_lshl_b32 s9, s9, 13
    v_lshlrev_b32 v20, 7, v20
    v_add_u32 v20, s9, v20
    """)
    for ks in range(4):
        a(f"""
        v_xor_b32 v23, {2*ks}, v22
        v_lshl_add_u32 v{4+ks}, v23, 4, v20
        v_add_u32 v{8+ks}, 0x10000, v{4+ks}
        """)
    a(f"""
    s_lshr_b32 s9, s11, 1            ; hp
    v_bfe_u32 v20, v1, 2, 2          ; r
    v_lshl_add_u32 v22, v21, 3, v20  ; 8g + r
    v_lshlrev_b32 v22, 7, v22
    v_lshrrev_b32 v20, 1, v20
    v_xor_b32 v20, s9, v20
    v_lshl_add_u32 v22, v20, 6, v22
    v_bfe_u32 v20, v1, 4, 1
    v_lshl_add_u32 v22, v20, 5, v22
    v_and_b32 v20, 3, v1
    v_lshl_add_u32 v22, v20, 3, v22
    v_add_u32 v12, {RING}, v22
    v_mov_b32 v201, v22
    v_add_u32 v200, 0x10000, v22
    s_lshl_b32 s9, s47, 2
    s_and_b32 s10, s44, 1
    s_lshl_b32 s10, s10, 1
    s_add_u32 s9, s9, s10
    s_lshl_b32 s9, s9, 5
    s_lshl_b32 s10, s48, 2
    s_add_u32 s9, s9, s10
    s_and_b32 s10, s44, 2
    s_add_u32 s9, s9, s10
    s_lshl_b32 s9, s9, 10
    s_add_u32 s9, s9, {WS_PQ}
    v_lshlrev_b32 v17, 4, v1
    v_add_u32 v15, s9, v17
    v_add_u32 v16, 0x8000, v15
    """)

def reads(a, si):
    u, ks, n = steps[si]
    fs = 24 + 16 * (si & 1)
    slot = u % 4
    if u < 16: i, k4 = u >> 1, 2 * (u & 1) + ks
    else: i, k4 = u - 16, ks
    xr = (4 if i < 4 else 8) + k4
    xo = (i & 3) * 16384
    wr, wo = (200, wloc(u) - 65536 + ks * 2048) if 16 <= u < 20 else (12, wloc(u) - RING + ks * 2048)
    if u == 23: wr, wo = 201, wloc(u) + ks * 2048
    a(f"ds_read_b128 {vr(fs,4)}, v{xr} offset:{xo}")
    a(f"ds_read_b64_tr_b16 {vr(fs+8,2)}, v{wr} offset:{wo}")
    a(f"ds_read_b64_tr_b16 {vr(fs+10,2)}, v{wr} offset:{wo + 512}")
    a(f"ds_read_b128 {vr(fs+4,4)}, v{xr} offset:{xo + 4096}")
    if u < 16:
        a(f"ds_read_b64_tr_b16 {vr(fs+12,2)}, v12 offset:{wo + 4096}")
        a(f"ds_read_b64_tr_b16 {vr(fs+14,2)}, v12 offset:{wo + 4096 + 512}")
        return 6
    return 4

def mfmas(a, si):
    u, ks, n = steps[si]
    fs = 24 + 16 * (si & 1)
    if u < 16:
        for (acc, xa, wb) in ((64, fs, fs+8), (96, fs+4, fs+8), (80, fs, fs+12), (112, fs+4, fs+12)):
            c = ("1.0" if acc in (64, 96) else "0") if si == 0 else vr(acc, 16)
            a(f"v_mfma_f32_32x32x16_bf16 {vr(acc,16)}, {vr(xa,4)}, {vr(wb,4)}, {c}")
    else:
        for (acc, xa, wb) in ((128, fs, fs+8), (144, fs+4, fs+8)):
            c = "1.0" if si == 32 else vr(acc, 16)
            a(f"v_mfma_f32_32x32x16_bf16 {vr(acc,16)}, {vr(wb,4)}, {vr(xa,4)}, {c}")

def need(u):
    if u < 16: return [f"x{2*(u>>1)}", f"x{2*(u>>1)+1}", f"w{u}"]
    return [f"w{u}"]

def gen_gemm_B(a):
    D = GB["D"]; vm = D.vm
    if STAMP: common_late(a)
    frag_addrs(a)
    for x in range(2, XLA): D.x_item(x)
    if LA == 3: D.w_item(2)
    stamp(a, 1)
    def wq_regs(m):
        for ks in range(4):
            for h in range(2):
                a(f"ds_read_b64_tr_b16 {vr(64+16*m+4*ks+2*h,2)}, v200 offset:{wloc(16+m) - 65536 + ks*2048 + 512*h}")
    def xq_reads(q, slot):
        fs = 24 + 8 * slot
        a(f"ds_read_b128 {vr(fs,4)}, v{4 + (q & 3)} offset:{(q >> 2)*16384}")
        a(f"ds_read_b128 {vr(fs+4,4)}, v{4 + (q & 3)} offset:{(q >> 2)*16384 + 4096}")
    def q_mfmas(q, slot):
        fs = 24 + 8 * slot
        for acc, xa in ((128, fs), (144, fs + 4)):
            c = "1.0" if q == 0 else vr(acc, 16)
            a(f"v_mfma_f32_32x32x16_bf16 {vr(acc,16)}, {vr(64+4*q,4)}, {vr(xa,4)}, {c}")
    prev = []
    a(f"s_setprio {PRIO_B1}")
    for j in range(16):
        nd = need(j)
        if j in (1, 3, 5, 7): nd = nd + [f"w{16 + j//2}"]
        vm.wait(nd, "lgkmcnt(0)")
        a("s_barrier")
        if j in (0, 4, 8, 12): stamp(a)
        cur = [(q, (2 * j + i) % 4) for i, q in enumerate(THIN.get(j, []))]
        if j in (1, 3, 5, 7): wq_regs(j // 2)
        for q, sl in cur: xq_reads(q, sl)
        if MF_FIRST:
            for q, sl in prev: q_mfmas(q, sl)
        if XFIRST and XLA + j < 16: D.x_item(XLA + j)
        if j + LA < 16: D.w_item(j + LA)
        if not XFIRST and XLA + j < 16: D.x_item(XLA + j)
        if j in (0, 2, 4): D.w_item(17 + j // 2)
        if j == 9:
            if not STAMP: common_late(a)
            phi_consts(a)
        if j == 12:
            D.w_item(23)
            a("""
            v_and_b32 v202, 7, v1
            v_lshlrev_b32 v202, 2, v202
            global_load_dword v203, v202, s[32:33] sc1
            """)
            vm.issue("gate")
        if j >= 13: D.w_item(20 + j - 13)
        for n in WOE.get(j, []): wo_item(a, vm, n)
        if not MF_FIRST:
            for q, sl in prev: q_mfmas(q, sl)
        prev = cur
    done = sum(len(v) for v in THIN.values())
    a(f"s_setprio {PRIO_B}")
    vm.wait(["w20", "w21", "w22", "w23"], "lgkmcnt(0)")
    a("s_barrier")
    stamp(a)
    assert not prev and done >= 8
    lg = LG(a)
    Q = list(range(done, 32))
    def p2reads(n):
        q = Q[n]
        fs = P2F[n % len(P2F)]
        i, ks = q >> 2, q & 3
        u = 16 + i
        xr, xo = (4 if i < 4 else 8) + ks, (i & 3) * 16384
        lg.rd(f"ds_read_b128 {vr(fs,4)}, v{xr} offset:{xo}")
        if q >= 16:
            wr, wo = (201, wloc(u) + ks * 2048) if u == 23 else (12, wloc(u) - RING + ks * 2048)
            lg.rd(f"ds_read_b64_tr_b16 {vr(fs+8,2)}, v{wr} offset:{wo}")
            lg.rd(f"ds_read_b64_tr_b16 {vr(fs+10,2)}, v{wr} offset:{wo + 512}")
        lg.rd(f"ds_read_b128 {vr(fs+4,4)}, v{xr} offset:{xo + 4096}")
    for n in range(P2D): p2reads(n)
    for n, q in enumerate(Q):
        fs = P2F[n % len(P2F)]
        wf = fs + 8 if q >= 16 else 64 + 4 * q
        lg.need(f"v_mfma_f32_32x32x16_bf16 {vr(128,16)}, {vr(wf,4)}, {vr(fs,4)}, {vr(128,16)}")
        lg.need(f"v_mfma_f32_32x32x16_bf16 {vr(144,16)}, {vr(wf,4)}, {vr(fs+4,4)}, {vr(144,16)}")
        if n + P2D < len(Q): p2reads(n + P2D)
    stamp(a)
    for ins in phi_list(128, 160, 56): a(ins)
    a("""
    global_store_dwordx4 v15, v[160:163], s[34:35] sc1
    global_store_dwordx4 v15, v[164:167], s[34:35] offset:1024 sc1
    """)
    for ins in phi_list(144, 168, 56): a(ins)
    a("""
    global_store_dwordx4 v16, v[168:171], s[34:35] sc1
    global_store_dwordx4 v16, v[172:175], s[34:35] offset:1024 sc1
    s_setprio 0
    v_add_u32 v238, 0x10000, v238
    s_lshl_b32 s9, s47, 1
    s_and_b32 s10, s44, 1
    s_add_u32 s9, s9, s10
    s_mul_i32 s9, s9, %d
    s_lshl_b32 s10, s48, 7
    s_add_u32 s9, s9, s10
    s_and_b32 s10, s44, 2
    s_lshl_b32 s10, s10, 1
    s_add_u32 s9, s9, s10
    s_add_u32 s15, s9, %d
    """ % (ZS, WS_Z + 1536))
    stamp(a)
    gate_verify(a, 203, 20, 21)
    a("s_mov_b32 s14, 1")
    if BWPOS == 2: a("s_barrier")
    if SUBR:
        a("s_call_b64 s[100:101], L_setup")
        a("s_nop 0")
    if BWPOS == 25: a("s_barrier")
    a("s_waitcnt vmcnt(0)")
    store_flag(a, "s15", 22, 23)
    stamp(a)
    if BWPOS == 3: a("s_barrier")
    for n in (WO_LATE[1::2] if ILV else WO_LATE[NLA:]): wo_item(a, vm, n)
    a("s_branch L_p2w")

JX = 19

def gen_gemm_A(a):
    a("L_gA:")
    a("s_nop 4")
    D = GemmDma(a); vm = D.vm
    frag_addrs(a)
    phi_consts(a)
    a(f"""
    v_and_b32 v20, 16, v1
    v_cmp_eq_u32 s[60:61], 0, v20
    v_mov_b32 v196, 0x3f803f80
    v_mov_b32 v197, 0x3f803f80
    v_mov_b32 v198, 0x3f803f80
    v_mov_b32 v199, 0x3f803f80
    s_lshl_b32 s9, s48, 2
    s_add_u32 s9, s9, s11
    s_mul_i32 s98, s9, {ZS}
    s_add_u32 s98, s98, {WS_Z}
    v_lshlrev_b32 v13, 2, v1
    v_add_u32 v13, s98, v13
    s_lshl_b32 s9, s48, 2
    s_lshr_b32 s10, s47, 2
    s_add_u32 s9, s9, s10
    s_mul_i32 s99, s9, {ZS}
    s_and_b32 s10, s47, 3
    s_lshl_b32 s10, s10, 7
    s_add_u32 s99, s99, s10
    s_lshl_b32 s10, s11, 2
    s_add_u32 s99, s99, s10
    s_add_u32 s99, s99, {WS_Z + 3328}
    s_waitcnt lgkmcnt(0)
    """)
    common_late(a)
    if TLBW:
        a(f"""
        v_and_b32 v232, 3, v1
        v_lshlrev_b32 v232, 21, v232
        v_add_u32 v232, 4096, v232
        v_cmp_eq_u32 vcc, 4096, v232
        v_cndmask_b32 v232, v232, 0, vcc
        v_min_u32 v232, {(4 << 20) + 32768}, v232
        v_or_b32 v233, 0x6000, v232
        v_cmp_lt_u32 vcc, {4 << 20}, v232
        v_cndmask_b32 v232, v232, v233, vcc
        global_load_dword v233, v232, s[34:35]
        s_lshl_b32 s9, s62, 15
        s_lshl_b32 s10, s63, 8
        s_add_u32 s9, s9, s10
        v_mov_b32 v234, s9
        global_load_dword v235, v234, s[30:31]
        v_mov_b32 v234, 0
        global_load_dword v236, v234, s[12:13]
        """)
    a("""
    v_and_b32 v202, 7, v1
    v_lshlrev_b32 v202, 2, v202
    ; hand-over flag of head L: block 5, region L, in a row the head does not use (even: row 24, odd: row 4)
    s_and_b32 s9, s44, 1
    s_mul_i32 s9, s9, %d
    s_sub_u32 s9, %d, s9
    s_add_u32 s9, s9, s97
    v_mov_b32 v204, s9                   ; inbox
    s_xor_b32 s10, s44, 1
    s_and_b32 s9, s10, 1
    s_mul_i32 s9, s9, %d
    s_sub_u32 s9, %d, s9
    s_lshl_b32 s10, s10, 11
    s_add_u32 s9, s9, s10
    v_mov_b32 v206, s9                   ; partner's inbox
    v_mov_b32 v205, 0
    v_mov_b32 v207, 1
    """ % (20*64, XB*8192 + 24*64, 20*64, XB*8192 + 24*64))
    stamp(a, 1)
    US = (24, 128)
    def ureads(u):
        L = []
        i = u >> 1
        for ks in range(2):
            fs = US[u & 1] + 16 * ks
            xr, xo = (4 if i < 4 else 8) + 2 * (u & 1) + ks, (i & 3) * 16384
            wo = wloc(u) - RING + ks * 2048
            L += [f"ds_read_b128 {vr(fs,4)}, v{xr} offset:{xo}",
                  f"ds_read_b64_tr_b16 {vr(fs+8,2)}, v12 offset:{wo}",
                  f"ds_read_b64_tr_b16 {vr(fs+10,2)}, v12 offset:{wo + 512}",
                  f"ds_read_b128 {vr(fs+4,4)}, v{xr} offset:{xo + 4096}",
                  f"ds_read_b64_tr_b16 {vr(fs+12,2)}, v12 offset:{wo + 4096}",
                  f"ds_read_b64_tr_b16 {vr(fs+14,2)}, v12 offset:{wo + 4096 + 512}"]
        return L
    def umfmas(u):
        M = []
        for ks in range(2):
            fs = US[u & 1] + 16 * ks
            for (acc, xa, wb) in ((64, fs, fs+8), (96, fs+4, fs+8), (80, fs, fs+12), (112, fs+4, fs+12)):
                c = ("1.0" if acc in (64, 96) else "0") if (u == 0 and ks == 0) else vr(acc, 16)
                M.append(f"v_mfma_f32_32x32x16_bf16 {vr(acc,16)}, {vr(xa,4)}, {vr(wb,4)}, {c}")
        return M
    a("s_barrier")
    stamp(a)
    for x in ureads(0): a(x)
    for u in range(16):
        a("s_waitcnt lgkmcnt(0)")
        if DYNP and u == 15: a("s_setprio 3")
        a("s_barrier")
        if u in (3, 7, 11, 15): stamp(a)
        R = ureads(u + 1) if u < 15 else []
        if u == 11: R.append("global_load_dword v203, v202, s[32:33] sc1")
        if u == 12: R.append("ds_write_b32 v204, v205")
        k = 0
        for i, m in enumerate(umfmas(u)):
            a(m)
            tgt = min(len(R), RPM * (i + 1))
            while k < tgt: a(R[k]); k += 1
    a(f"s_setprio {PRIO_A}")
    a(f"""
    v_and_b32 v25, 31, v1
    v_lshlrev_b32 v25, 6, v25
    v_lshrrev_b32 v24, 5, v1
    v_lshl_add_u32 v25, v24, 5, v25
    s_and_b32 s9, s44, 1
    s_lshl_b32 s10, s9, 13
    s_mul_i32 s9, s9, {15*64}
    s_add_u32 s9, s9, s97
    s_add_u32 s9, s9, {XB*8192}
    v_lshlrev_b32 v24, 2, v1
    v_add_u32 v24, s9, v24
    s_and_b32 s9, s44, 2
    s_lshl_b32 s9, s9, 11
    s_add_u32 s9, s9, s10
    s_add_u32 s9, s9, {XB*8192}
    v_add_u32 v25, s9, v25
    """)
    P = phi_list(64, 160, 56, APK) + phi_list(96, 168, 56, APK)
    Vc = [f"v_cvt_pk_bf16_f32 v{176+p}, v{80+2*p}, v{81+2*p}" for p in range(8)] + [f"v_cvt_pk_bf16_f32 v{184+p}, v{112+2*p}, v{113+2*p}" for p in range(8)]
    E = []
    pendm = []
    for ins in P:
        E.append(ins)
        if pendm:
            pendm[0][0] -= 1
            if pendm[0][0] <= 0: E.append(pendm.pop(0)[1])
        if ins.startswith("v_cvt_pk"):
            dreg = int(ins.split()[1][1:-1])
            k = dreg - 160
            E.append(Vc[k])
            if k % 4 == 3:
                j = k // 4
                c1 = "0" if j == 0 else vr(128, 16)
                c2 = "0" if j == 0 else vr(144, 16)
                pendm.append([2, f"v_mfma_f32_32x32x16_bf16 {vr(128,16)}, {vr(160+4*j,4)}, {vr(176+4*j,4)}, {c1}"])
                pendm.append([5, f"v_mfma_f32_32x32x16_bf16 {vr(144,16)}, {vr(160+4*j,4)}, v[196:199], {c2}"])
    E += [m[1] for m in pendm]
    E += [f"v_cndmask_b32 v{32+r}, v{144+r}, v{128+r}, s[60:61]" for r in range(8)]
    E += [f"v_cndmask_b32 v{40+r}, v{136+r}, v{152+r}, s[60:61]" for r in range(8)]
    for ins in E:
        if DYNP and "mfma" in ins:
            a("s_setprio 3"); a(ins); a("s_setprio 0")
        else: a(ins)
    lw0, lw1 = label("w"), label("w")
    a(f"""
    s_mov_b32 exec_lo, 0x1ffff
    s_mov_b32 exec_hi, 0x1ffff
    ds_write_b128 v25, v[32:35]
    ds_write_b128 v25, v[36:39] offset:16
    s_mov_b32 exec_lo, 0xffff8000
    s_mov_b32 exec_hi, 0xffff8000
    ds_write_b128 v25, v[40:43] offset:2048
    ds_write_b128 v25, v[44:47] offset:2064
    s_mov_b64 exec, -1
    ds_write_b32 v206, v207
    s_waitcnt vmcnt(0)
    """)
    gate_verify(a, 203, 20, 21)
    stamp(a)
    a(f"""
    s_mov_b32 s10, 0
    {lw0}:
    ds_read_b32 v20, v204
    s_add_u32 s10, s10, 1
    s_waitcnt lgkmcnt(0)
    v_cmp_eq_u32 vcc, 0, v20
    s_cmp_gt_u32 s10, {SPIN_MAX*16}
    s_cbranch_scc1 {lw1}
    s_cbranch_vccnz {lw0}
    {lw1}:
    """)
    for k in range(5):
        a(f"ds_read_b32 v{32+k}, v24 offset:{256*k}")
        a(f"ds_read_b32 v{40+k}, v24 offset:{8192 + 256*k}")
    for k in range(5):
        a(f"s_waitcnt lgkmcnt({8-2*k})")
        a(f"v_add_f32 v{32+k}, v{32+k}, v{40+k}")
        if k == 4: a("s_mov_b64 exec, 0xffff")
        a(f"global_atomic_add_f32 v13, v{32+k}, s[34:35] offset:{256*k} sc1")
    a("s_mov_b64 exec, -1")
    a("s_setprio 0")
    vm.issue("at", 5)
    stamp(a)
    for n in (XB, XB + 1): wo_item(a, vm, n)
    a("s_mov_b32 s14, 1")
    if SUBR:
        a("s_call_b64 s[100:101], L_setup")
        a("s_nop 0")
    vm.wait("at")
    store_flag(a, "s99", 22, 23)
    stamp(a)
    a("s_barrier")
    for n in (WO_LATE[0::2] if ILV else WO_LATE[:NLA]): wo_item(a, vm, n)
    a("s_branch L_p2w")

UVP = 2064
UVH = 29 * UVP
KCL = 172 * 16
KCP = 4 * KCL + 64
XP0 = 143360
XPC = 5120
XPP = 1280
KC0 = XP0 - 4 * KCP
S_LEN = 2112
S0 = KC0 - 8 * S_LEN
assert KC0 + 3 * KCP >= 58 * UVP and S0 >= 81920 and XP0 + 4 * XPC == LDS
CNT_LDS = KC0 + 3 * KCP + 4 * KCL
assert KC0 % 16 == 0 and S0 % 16 == 0 and UVH + 2048 < 65536

def ssm_first(a):
    a(f"""
    s_lshl_b32 s47, s45, 4
    s_add_u32 s47, s47, s46           ; cg
    s_lshr_b32 s49, s44, 2
    s_lshl_b32 s9, s47, 2
    s_add_u32 s9, s9, s11
    s_lshl_b32 s9, s9, 8
    s_lshl_b32 s10, s49, 7
    s_add_u32 s9, s9, s10
    v_lshlrev_b32 v2, 1, v1
    v_add_u32 v2, s9, v2
    s_lshl_b32 s8, s47, 3
    s_lshr_b32 s9, s46, 1
    s_add_u32 s9, s9, s44
    s_and_b32 s9, s9, 7               ; bhi
    v_bfe_u32 v10, v1, 1, 3
    s_lshl_b32 s10, s9, 3
    v_add_u32 v250, s10, v10          ; beta
    v_lshrrev_b32 v251, 4, v1         ; G
    v_and_b32 v12, 1, v1              ; half
    v_lshlrev_b32 v13, 3, v250
    v_lshl_add_u32 v13, v251, 1, v13
    v_add_u32 v13, v13, v12           ; q
    v_lshlrev_b32 v13, 12, v13
    v_add_u32 v249, s8, v13
    s_xor_b32 s15, s49, 1
    s_lshl_b32 s15, s15, 7
    s_add_u32 s15, s15, s47
    s_waitcnt lgkmcnt(0)
    global_load_ushort v4, v2, s[16:17]
    global_load_ushort v5, v2, s[18:19]
    global_load_ushort v6, v2, s[20:21]
    global_load_ushort v7, v2, s[22:23]
    s_load_dwordx2 s[52:53], s[24:25], s8
    s_load_dwordx2 s[54:55], s[26:27], s8
    s_cmp_lt_u32 s15, 8
    s_cbranch_scc1 L_zero
    L_zero_back:
    s_barrier
    global_load_dwordx2 v[240:241], v249, s[4:5]
    global_load_dwordx2 v[242:243], v249, s[4:5] offset:1024
    s_branch L_ssm
    """)

def gen_ssm(a):
    vm = VM(a)
    a(f"""
    L_zero:
    s_lshl_b32 s9, s47, 2
    s_add_u32 s9, s9, s11
    s_mul_i32 s9, s9, {ZS}
    s_add_u32 s9, s9, {WS_Z}
    v_lshlrev_b32 v20, 4, v1
    v_add_u32 v20, s9, v20
    v_mov_b32 v24, 0
    v_mov_b32 v25, 0
    v_mov_b32 v26, 0
    v_mov_b32 v27, 0
    global_store_dwordx4 v20, v[24:27], s[34:35] sc0 sc1
    global_store_dwordx4 v20, v[24:27], s[34:35] offset:1024 sc0 sc1
    global_store_dwordx4 v20, v[24:27], s[34:35] offset:2048 sc0 sc1
    global_store_dwordx4 v20, v[24:27], s[34:35] offset:{ZS-1024} sc0 sc1
    s_branch L_zero_back
    """)
    a("L_ssm:")
    a("s_nop 4")
    common_late(a)
    a(f"""
    s_mul_i32 s50, s11, {KCL}
    s_add_u32 s50, s50, {KC0}
    s_lshl_b32 s51, s11, 9
    v_mul_u32_u24 v14, {XPP}, v251
    v_lshl_add_u32 v14, v250, 4, v14
    v_lshl_add_u32 v14, v12, 3, v14
    v_add_u32 v248, {XP0 + 256}, v14
    s_lshl_b32 s9, s49, 8
    s_add_u32 s98, s9, s51
    s_add_u32 s99, s98, {UVH}
    s_lshl_b32 s9, s47, 2
    s_add_u32 s9, s9, s11
    s_lshl_b32 s48, s9, 12            ; channel*4096
    s_waitcnt lgkmcnt(0)
    s_cmp_ge_u32 s11, 2
    s_cselect_b32 s9, s53, s52
    s_cselect_b32 s60, s55, s54
    s_lshl_b32 s10, s9, 16
    s_and_b32 s9, s9, 0xffff0000
    s_lshl_b32 s61, s60, 16
    s_and_b32 s60, s60, 0xffff0000
    s_bitcmp1_b32 s11, 0
    s_cselect_b32 s9, s9, s10
    s_cselect_b32 s60, s60, s61
    s_mov_b32 s56, {f32(L2E_HI)}
    s_mov_b32 s57, {f32(L2E_LO)}
    v_mov_b32 v8, s9
    """)
    def exp_bf16(x, t0, t1):
        a(f"""
        v_mul_f32 v{t0}, s56, v{x}
        v_rndne_f32 v{t1}, v{t0}
        v_sub_f32 v{t0}, v{t0}, v{t1}
        v_fma_f32 v{t0}, v{x}, s57, v{t0}
        v_exp_f32 v{t0}, v{t0}
        v_cvt_i32_f32 v{t1}, v{t1}
        v_ldexp_f32 v{t0}, v{t0}, v{t1}
        v_cvt_pk_bf16_f32 v{t0}, v{t0}, v{t0}
        v_lshlrev_b32 v{x}, 16, v{t0}
        """)
    exp_bf16(8, 10, 11)
    a("""
    s_mov_b32 m0, s98
    v_mov_b32 v10, 0x3f80
    ds_write_addtid_b32 v10
    """)
    stamp(a, 1)
    a("s_waitcnt vmcnt(2)")
    stamp(a)
    lf = label("f")
    a(f"""
    s_cmp_ge_u32 s15, 8
    s_cbranch_scc1 {lf}
    s_lshl_b32 s9, s47, 2
    s_add_u32 s9, s9, s11
    v_mov_b32 v20, s9
    v_mov_b32 v21, 1
    s_mov_b64 exec, 1
    global_store_byte v20, v21, s[32:33] sc0 sc1
    s_mov_b64 exec, -1
    {lf}:
    """)
    a("""
    v_lshlrev_b32 v4, 16, v4
    v_lshlrev_b32 v5, 16, v5
    v_lshlrev_b32 v6, 16, v6
    v_lshlrev_b32 v7, 16, v7
    """)
    exp_bf16(4, 10, 11)
    a(f"""
    v_mul_f32 v4, v4, v8
    v_mul_f32 v4, {f32(-LOG2E)}, v4
    v_mul_f32 v5, v5, v8
    v_mul_f32 v5, 0.15915494, v5
    v_add_f32 v9, v8, v8
    v_mul_f32 v30, v6, v9
    v_mul_f32_e64 v31, v7, -v9
    """)
    V = lambda b: 64 + 2 * b
    U = lambda c: 30 + 2 * c
    pw = [(8, V(1)), (1, 20), (256, 24), (512, 26), (1024, 28)]
    for i, (p, d) in enumerate(pw):
        t = 10 + 2 * i
        if p == 1:
            a(f"v_exp_f32 v{t}, v4")
            a(f"v_fract_f32 v{t+1}, v5")
        else:
            a(f"v_mul_f32 v{t}, {f32(float(p))}, v4")
            a(f"v_mul_f32 v{t+1}, {f32(float(p))}, v5")
            a(f"v_exp_f32 v{t}, v{t}")
            a(f"v_fract_f32 v{t+1}, v{t+1}")
    for i, (p, d) in enumerate(pw):
        t = 10 + 2 * i
        a(f"v_cos_f32 v{d}, v{t+1}")
        a(f"v_sin_f32 v{d+1}, v{t+1}")
    for i, (p, d) in enumerate(pw):
        t = 10 + 2 * i
        a(f"v_mul_f32 v{d}, v{d}, v{t}")
        a(f"v_mul_f32 v{d+1}, v{d+1}, v{t}")
    def cm1(d, x, y):
        return f"v_pk_mul_f32 {vr(d,2)}, {vr(x,2)}, {vr(y,2)} op_sel:[0,0] op_sel_hi:[1,0]"
    def cm2(d, x, y, conj):
        neg = "neg_hi:[1,0,0]" if conj else "neg_lo:[1,0,0]"
        return f"v_pk_fma_f32 {vr(d,2)}, {vr(x,2)}, {vr(y,2)}, {vr(d,2)} op_sel:[1,1,0] op_sel_hi:[0,1,1] {neg}"
    pk = [0]; cur = [0]
    def puts(lst):
        W = []
        for src, rows in lst:
            if not rows: continue
            t = 10 + (pk[0] % 10); pk[0] += 1
            a(f"v_cvt_pk_bf16_f32 v{t}, v{src}, v{src+1}")
            W += [(r, t) for r in rows]
        W.sort(key=lambda x: (x[0] >= 29) != bool(cur[0]))
        for r, t in W:
            h = int(r >= 29)
            if h != cur[0]:
                a(f"s_mov_b32 m0, s{98+h}"); cur[0] = h
            a(f"ds_write_addtid_b32 v{t} offset:{(r - 29*h)*UVP}")
    def batch(items):
        for (d, x, y, cj, rows) in items: a(cm1(d, x, y))
        for (d, x, y, cj, rows) in items: a(cm2(d, x, y, cj))
        puts([(d, rows) for (d, x, y, cj, rows) in items])
    urow = {0: [32+0], 1: [32+1], 2: [32+2], 3: [32+3], 4: [32+8], 5: [32+9], 6: [32+10], 7: [32+11], 8: [],
            256: [32+4, 32+5], 258: [32+6], 260: [32+7, 32+12, 32+13], 262: [32+14], 264: [32+15],
            512: [32+16], 516: [32+17], 520: [32+18], 1032: [32+19],
            768: [32+20], 772: [32+21], 776: [32+22], 1544: [32+23], 1288: [32+24], 1800: [32+25]}
    puts([(V(1), [1]), (30, urow[0])])
    H = {}
    nxt = [128]
    def home(e):
        H[e] = nxt[0]; nxt[0] += 2; return H[e]
    batch([(V(2), V(1), V(1), False, [2]), (U(1), U(0), 20, True, urow[1]), (home(256), U(0), 24, True, urow[256]), (home(512), U(0), 26, True, urow[512])])
    batch([(V(3), V(2), V(1), False, [3]), (V(4), V(2), V(2), False, [4]), (U(2), U(1), 20, True, urow[2]), (home(768), H[256], 26, True, urow[768])])
    extra = {
        0: [(U(3), U(2), 20, True, urow[3]), (lambda: (home(258), U(2), 24, True, urow[258]))],
        1: [(U(4), U(3), 20, True, urow[4])],
        2: [(U(5), U(4), 20, True, urow[5]), (lambda: (home(260), U(4), 24, True, urow[260])), (lambda: (home(516), U(4), 26, True, urow[516]))],
        3: [(U(6), U(5), 20, True, urow[6]), (lambda: (home(772), H[260], 26, True, urow[772]))],
        4: [(U(7), U(6), 20, True, urow[7]), (lambda: (home(262), U(6), 24, True, urow[262]))],
        5: [(U(8), U(7), 20, True, urow[8])],
        6: [(lambda: (home(264), U(8), 24, True, urow[264])), (lambda: (home(520), U(8), 26, True, urow[520])), (lambda: (home(1032), U(8), 28, True, urow[1032]))],
    }
    for step in range(7):
        items = []
        for j in range(4):
            b = 5 + 4 * step + j
            if b <= 31:
                items.append((V(b), V(b - 4), V(4), False, [b]))
        for e in extra[step]:
            items.append(e() if callable(e) else e)
        batch(items)
        if step == GSTEP[0]: a("global_load_dwordx2 v[244:245], v249, s[4:5] offset:2048")
        if step == GSTEP[1]: a("global_load_dwordx2 v[246:247], v249, s[4:5] offset:3072")
    batch([(home(776), H[264], 26, True, urow[776]), (home(1288), H[264], 28, True, urow[1288]), (home(1544), H[520], 28, True, urow[1544])])
    batch([(home(1800), H[776], 28, True, urow[1800])])
    stamp(a)
    BASE = 3 * KCP
    a(f"""
    v_lshlrev_b32 v6, 4, v1
    v_add_u32 v6, s50, v6
    s_cmp_lg_u32 s49, 0
    s_cbranch_scc1 L_s_h1
    v_and_b32 v10, 31, v1
    v_min_u32 v11, 25, v10
    v_add_u32 v11, 32, v11
    v_mul_u32_u24 v10, {UVP}, v10
    v_mul_u32_u24 v11, {UVP}, v11
    v_lshrrev_b32 v12, 5, v1
    v_lshlrev_b32 v12, 4, v12
    v_add_u32 v12, s51, v12
    v_add_u32 v4, v10, v12
    v_add_u32 v5, v11, v12
    v_lshlrev_b32 v10, 4, v1
    s_add_u32 s9, s50, {BASE + 71*16}
    v_sub_u32 v10, s9, v10
    v_and_b32 v11, 3, v1
    v_lshlrev_b32 v11, 7, v11
    v_bfe_u32 v12, v1, 2, 3
    v_lshlrev_b32 v12, 1, v12
    v_sub_u32 v11, v11, v12
    v_lshrrev_b32 v12, 5, v1
    v_lshlrev_b32 v12, 5, v12
    v_sub_u32 v11, v11, v12
    s_add_u32 s9, s50, {BASE + 140*16}
    v_add_u32 v11, s9, v11
    v_mov_b32 v13, s60
    v_cmp_eq_u32 vcc, 0, v1
    v_cndmask_b32 v13, 0, v13, vcc
    v_mov_b32 v12, s50
    s_waitcnt lgkmcnt(0)
    s_barrier
    """)
    stamp(a)
    def kr(ks):
        a(f"ds_read_b128 {vr(64+8*(ks%8),4)}, v5 offset:{32*ks}")
        a(f"ds_read_b128 {vr(68+8*(ks%8),4)}, v4 offset:{32*ks}")
    for ks in range(7): kr(ks)
    for ks in range(16):
        if ks + 7 < 16:
            kr(ks + 7)
            a("s_waitcnt lgkmcnt(14)")
        else:
            a(f"s_waitcnt lgkmcnt({2*(15-ks)})")
        c = "0" if ks == 0 else vr(32, 16)
        a(f"v_mfma_f32_32x32x16_bf16 {vr(32,16)}, {vr(64+8*(ks%8),4)}, {vr(68+8*(ks%8),4)}, {c}")
    stamp(a)
    a("v_add_f32 v32, v32, v13")
    for k in range(4):
        a(f"v_cvt_pk_bf16_f32 v{52+k}, v{32+7-2*k}, v{32+6-2*k}")
    a(f"""
    v_cvt_pk_bf16_f32 v56, v42, v42
    v_cvt_pk_bf16_f32 v57, v41, v41
    v_cvt_pk_bf16_f32 v58, v41, v40
    v_cvt_pk_bf16_f32 v59, v40, v40
    v_cvt_pk_bf16_f32 v60, v43, v44
    ds_write_b128 v10, v[52:55] offset:1024
    ds_write_b128 v10, v[56:59]
    ds_write_b16 v11, v60 offset:62
    ds_write_b16_d16_hi v11, v60 offset:46
    v_mov_b32 v60, 0
    v_and_b32 v61, 0xffff0000, v56
    v_mov_b32 v62, v56
    v_mov_b32 v63, v56
    s_mov_b32 exec_lo, 0
    s_mov_b32 exec_hi, 0x80000000
    ds_write_b128 v12, v[60:63] offset:{BASE + 7*16}
    s_mov_b64 exec, -1
    s_branch L_s_h2
    L_s_h1:
    s_waitcnt lgkmcnt(0)
    s_barrier
    v_mov_b32 v16, 0
    v_mov_b32 v17, 0
    v_mov_b32 v18, 0
    v_mov_b32 v19, 0
    v_subrev_u32 v10, 11, v1
    v_lshrrev_b32 v11, 2, v10
    v_and_b32 v10, 3, v10
    v_lshl_add_u32 v10, v11, 3, v10
    v_add_u32 v10, 144, v10
    v_add_u32 v11, 129, v1
    v_cmp_gt_u32 vcc, 11, v1
    v_cndmask_b32 v10, v10, v11, vcc
    v_cmp_gt_u32 vcc, 7, v1
    v_cndmask_b32 v10, v10, v1, vcc
    v_lshlrev_b32 v10, 4, v10
    v_add_u32 v10, s50, v10
    s_mov_b64 exec, 0x7ffffff
    ds_write_b128 v10, v[16:19] offset:{BASE}
    s_mov_b64 exec, -1
    v_mul_u32_u24 v14, {XPP}, v251
    v_and_b32 v15, 15, v1
    v_lshl_add_u32 v14, v15, 4, v14
    s_mul_i32 s9, s11, {XPC}
    s_add_u32 s9, s9, {XP0}
    v_add_u32 v14, s9, v14
    ds_write_b128 v14, v[16:19]
    L_s_h2:
    s_waitcnt lgkmcnt(0)
    s_barrier
    """)
    stamp(a, 6)
    def copy_pass(D, T, off, masked):
        for k in range(4): a(f"v_mov_b32 v{T+k}, v{D+1+k}")
        for k in range(4): a(f"v_alignbit_b32 v{T+4+k}, v{D+k+1}, v{D+k}, 16")
        for k in range(4): a(f"v_alignbit_b32 v{T+8+k}, v{D+k+2}, v{D+k+1}, 16")
        if masked: a("s_mov_b32 exec_hi, 0xfff")
        a(f"ds_write_b128 v7, {vr(T,4)} offset:{1*KCP + off}")
        a(f"ds_write_b128 v7, {vr(T+4,4)} offset:{2*KCP + off}")
        a(f"ds_write_b128 v7, {vr(T+8,4)} offset:{0*KCP + off}")
        if masked: a("s_mov_b64 exec, -1")
    a(f"""
    s_lshl_b32 s9, s49, 10
    v_add_u32 v7, s9, v6
    ds_read_b128 v[64:67], v7 offset:{BASE}
    ds_read_b64 v[68:69], v7 offset:{BASE + 16}
    ds_read_b128 v[72:75], v7 offset:{BASE + 1024}
    ds_read_b64 v[76:77], v7 offset:{BASE + 1024 + 16}
    s_mov_b32 s9, 0x05040100
    s_mov_b32 s10, 0x07060302
    s_waitcnt lgkmcnt(2)
    """)
    copy_pass(64, 96, 0, False)
    a("""
    s_cmp_eq_u32 s49, 0
    s_cbranch_scc1 L_s_c1
    s_waitcnt lgkmcnt(3)
    """)
    copy_pass(72, 112, 1024, True)
    stamp(a, 7)
    a("""
    s_waitcnt vmcnt(0)
    s_branch L_s_c2
    L_s_c1:
    """)
    stamp(a, 7)
    a("""
    s_waitcnt vmcnt(0)
    L_s_c2:
    """)
    stamp(a)
    a(f"""
    v_perm_b32 v16, v242, v240, s9
    v_perm_b32 v17, v246, v244, s9
    v_perm_b32 v18, v242, v240, s10
    v_perm_b32 v19, v246, v244, s10
    v_perm_b32 v20, v243, v241, s9
    v_perm_b32 v21, v247, v245, s9
    v_perm_b32 v22, v243, v241, s10
    v_perm_b32 v23, v247, v245, s10
    ds_write_b64 v248, v[16:17]
    ds_write_b64 v248, v[18:19] offset:{XPC}
    ds_write_b64 v248, v[20:21] offset:{2*XPC}
    ds_write_b64 v248, v[22:23] offset:{3*XPC}
    s_cmp_lg_u32 s49, 0
    s_cbranch_scc1 L_s_help
    """)
    a(f"""
    v_and_b32 v10, 3, v1
    v_mul_u32_u24 v10, {KCP}, v10
    v_bfe_u32 v12, v1, 2, 2               ; i2
    v_lshlrev_b32 v13, 1, v251
    v_sub_u32 v13, v13, v12
    v_lshlrev_b32 v13, 3, v13
    v_add3_u32 v10, v10, v13, s50
    v_add_u32 v4, 24, v10
    s_mul_i32 s9, s11, {XPC}
    s_add_u32 s9, s9, {XP0}
    v_mul_u32_u24 v13, {XPP}, v251
    v_and_b32 v14, 15, v1
    v_lshl_add_u32 v13, v14, 4, v13
    v_add_u32 v7, s9, v13
    v_lshlrev_b32 v15, 6, v14
    v_and_b32 v9, 1, v251
    v_lshl_add_u32 v15, v9, 5, v15
    v_lshrrev_b32 v9, 1, v251
    v_lshl_add_u32 v15, v9, 4, v15
    s_add_u32 s10, s48, {WS_BG}
    v_add_u32 v9, s10, v15
    v_lshl_add_u32 v13, v251, 3, v12
    v_lshlrev_b32 v13, 6, v13
    v_and_b32 v14, 3, v1
    v_lshl_add_u32 v13, v14, 3, v13
    s_mul_i32 s9, s11, {2*S_LEN}
    s_add_u32 s9, s9, {S0}
    v_add_u32 v8, s9, v13                 ; vS
    s_setprio {PRIO_C}
    s_waitcnt lgkmcnt(0)
    s_barrier
    """)
    stamp(a)
    ACC = lambda rho, ct: 32 + 4 * (4 * rho + ct)
    fB = lambda s: 64 + 32 * (s % 2)
    fA = lambda s, lv, rho: (64 + 32 * (s % 2) + 16 + 8 * lv + 4 * rho) if lv < 2 else (128 + 8 * s + 4 * rho)
    def levels(s): return [0, 1, 2] if s <= 1 else [0, 1]
    def rhos(sig): return [0] if sig == 33 else [0, 1]
    def creads(s):
        L = []
        def A(lv, rho):
            dl = 2 * (s + 16 * lv) + rho
            return [f"ds_read_b64 {vr(fA(s,lv,rho)+2*h,2)}, v4 offset:{2144 - 32*dl + 8*h}" for h in range(2)]
        L += A(0, 0)
        for k in range(4):
            L.append(f"ds_read_b128 {vr(fB(s)+4*k,4)}, v7 offset:{(16*k + 16 - s)*16}")
        L += A(0, 1) + A(1, 0) + A(1, 1)
        if 2 in levels(s):
            for rho in rhos(s + 32): L += A(2, rho)
        return L
    FRb, SRb = 144, 176
    FR = []
    for tau in range(4):
        for ti_, v0 in ((0, 32), (1, 0)):
            for h in range(2):
                FR.append(f"ds_read_b64 {vr(FRb+8*tau+4*ti_+2*h,2)}, v4 offset:{(140+8*tau)*16 + v0 + 8*h}")
    SR = []
    for tau in range(4):
        for rho in range(2):
            for h in range(2):
                off = (tau & 1) * S_LEN + 256 * h + 32 * rho + 64 - 16 * (tau + 1)
                SR.append(f"ds_read_b64_tr_b16 {vr(SRb+8*tau+4*rho+2*h,2)}, v8 offset:{off}")
    lg = LG(a)
    for x in creads(0): lg.rd(x)
    started = set()
    for s in range(16):
        nxtL = creads(s + 1) if s + 1 < 16 else []
        if 4 <= s < 12: nxtL = nxtL + FR[2*(s-4):2*(s-4)+2]
        if s == SBAR: a("s_barrier")
        if s >= 12: nxtL = nxtL + SR[4*(s-12):4*(s-12)+4]
        M = []
        for lv in levels(s):
            for rho in rhos(s + 16 * lv):
                for k in range(4 - lv):
                    ct = k + lv
                    c = vr(ACC(rho, ct), 4) if (rho, ct) in started else "0"
                    started.add((rho, ct))
                    M.append(f"v_mfma_f32_16x16x32_bf16 {vr(ACC(rho,ct),4)}, {vr(fA(s,lv,rho),4)}, {vr(fB(s)+4*k,4)}, {c}")
        k = 0
        nM = max(1, len(M) - CTAIL)
        for i, mf in enumerate(M):
            lg.need(mf)
            tgt = min(len(nxtL), (len(nxtL) * (i + 1) + nM - 1) // nM)
            while k < tgt: lg.rd(nxtL[k]); k += 1
        if s == 7:
            stamp(a)
            if STAMP and not LIGHT: lg.sync()
    for tau in range(4):
        for rho in range(2):
            for ct in (2, 3):
                lg.need(f"v_mfma_f32_16x16x32_bf16 {vr(ACC(rho,ct),4)}, {vr(SRb+8*tau+4*rho,4)}, {vr(FRb+8*tau+4*(ct-2),4)}, {vr(ACC(rho,ct),4)}")
    stamp(a)
    for ct in range(4):
        t = 64 + 4 * ct
        for rho in range(2):
            A = ACC(rho, ct)
            a(f"v_cvt_pk_bf16_f32 v{t+2*rho}, v{A}, v{A+1}")
            a(f"v_cvt_pk_bf16_f32 v{t+2*rho+1}, v{A+2}, v{A+3}")
    for ct in range(4):
        t = 64 + 4 * ct
        a(f"v_permlane16_swap_b32 v{t}, v{t+2}")
        a(f"v_permlane16_swap_b32 v{t+1}, v{t+3}")
        a(f"global_store_dwordx4 v9, {vr(t,4)}, s[34:35] offset:{1024*ct} sc1")
    a(f"""
    s_setprio 0
    s_lshr_b32 s9, s47, 2
    s_mul_i32 s9, s9, {ZS}
    s_and_b32 s10, s47, 3
    s_lshl_b32 s10, s10, 7
    s_add_u32 s9, s9, s10
    s_lshl_b32 s10, s11, 2
    s_add_u32 s9, s9, s10
    s_add_u32 s15, s9, {WS_Z + 2816}
    """)
    if SUBR:
        a("s_call_b64 s[100:101], L_setup")
        a("s_nop 0")
    a("s_waitcnt vmcnt(0)")
    store_flag(a, "s15", 22, 23)
    stamp(a)
    a("s_barrier")
    a("s_branch L_p2")
    a("L_s_help:")
    a(f"""
    s_waitcnt lgkmcnt(0)
    s_barrier
    """)
    stamp(a, 9)
    if TLBW:
        a(f"""
        v_and_b32 v232, 3, v1
        v_lshlrev_b32 v232, 21, v232
        v_add_u32 v232, 4096, v232
        v_cmp_eq_u32 vcc, 4096, v232
        v_cndmask_b32 v232, v232, 0, vcc
        v_min_u32 v232, {(4 << 20) + 32768}, v232
        v_or_b32 v233, 0x6000, v232
        v_cmp_lt_u32 vcc, {4 << 20}, v232
        v_cndmask_b32 v232, v232, v233, vcc
        global_load_dword v233, v232, s[34:35]
        s_lshl_b32 s9, s62, 15
        s_lshl_b32 s10, s63, 8
        s_add_u32 s9, s9, s10
        v_mov_b32 v234, s9
        global_load_dword v235, v234, s[30:31]
        v_mov_b32 v234, 0
        global_load_dword v236, v234, s[12:13]
        """)
    a("""
    v_and_b32 v202, 7, v1
    v_lshlrev_b32 v202, 2, v202
    global_load_dword v203, v202, s[32:33] sc1
    """)
    vm.issue("gate")
    a("""
    v_lshlrev_b32 v20, 4, v1
    v_add_u32 v21, s48, v20
    global_load_dwordx4 v[204:207], v20, s[28:29]
    global_load_dwordx4 v[208:211], v21, s[4:5]
    global_load_dwordx4 v[212:215], v21, s[4:5] offset:1024
    global_load_dwordx4 v[216:219], v21, s[4:5] offset:2048
    global_load_dwordx4 v[220:223], v21, s[4:5] offset:3072
    """)
    vm.issue("gx", 5)
    if PREW:
        lab = label("pw")
        for part in range(3):
            a(f"""
            s_lshr_b32 s9, s46, 2
            s_cmp_lg_u32 s9, {part}
            s_cbranch_scc1 {lab}_{part}
            """)
            for n in (10 + 2 * part, 11 + 2 * part): wo_item(a, VM(a), n, 8 + (n & 1))
            a(f"{lab}_{part}:")
    for n in range(4): wo_item(a, vm, n)
    for rnd in range(2):
        a(f"""
        s_mul_i32 s9, s11, {XPC}
        s_add_u32 s9, s9, {XP0}
        """)
        for j in range(3):
            a(f"""
            v_add_u32 v13, {62 + 64*rnd + j}, v1
            v_and_b32 v14, 3, v13
            v_mul_u32_u24 v14, {XPP}, v14
            v_lshrrev_b32 v13, 2, v13
            v_lshl_add_u32 v14, v13, 4, v14
            v_add_u32 v{24+j}, s9, v14
            """)
        a(f"""
        ds_read_b64 v[128:129], v24 offset:8
        ds_read_b128 v[130:133], v25
        ds_read_b64 v[134:135], v26
        s_mul_i32 s9, s11, {2*S_LEN}
        s_add_u32 s9, s9, {S0}
        v_lshlrev_b32 v27, 4, v1
        v_add_u32 v27, s9, v27
        s_waitcnt lgkmcnt(0)
        """)
        for k in range(8):
            a(f"v_lshlrev_b32 v{136+2*k}, 16, v{128+k}")
            a(f"v_and_b32 v{137+2*k}, 0xffff0000, v{128+k}")
        X = lambda i: 136 + 4 + i
        a(f"""
        v_add_f32 v152, v{X(-3)}, v{X(-2)}
        v_add_f32 v153, v{X(-1)}, v{X(0)}
        v_add_f32 v154, v{X(1)}, v{X(2)}
        v_add_f32 v152, v152, v{X(3)}
        v_add_f32 v153, v153, v154
        v_add_f32 v152, v152, v153
        """)
        for e in range(1, 8): a(f"v_sub_f32 v{160+e}, v{X(e+3)}, v{X(e-4)}")
        for e in range(8): a(f"v_add_f32 v{168+e}, v{X(e-4)}, v{X(e+4)}")
        for e in range(1, 8): a(f"v_add_f32 v{152+e}, v{152+e-1}, v{160+e}")
        for e in range(8): a(f"v_add_f32 v{168+e}, v{168+e}, v{152+e}")
        for k in range(4):
            a(f"v_cvt_pk_bf16_f32 v{176+k}, v{152+2*k}, v{153+2*k}")
            a(f"v_cvt_pk_bf16_f32 v{180+k}, v{168+2*k}, v{169+2*k}")
        a(f"""
        ds_write_b128 v27, v[176:179] offset:{48 + 1024*rnd}
        ds_write_b128 v27, v[180:183] offset:{S_LEN + 48 + 1024*rnd}
        """)
        if rnd == 1 and PREW: vm.wait("wo3")
        for n in range(4 + 3*rnd, 7 + 3*rnd): wo_item(a, vm, n)
    a(f"""
    v_mov_b32 v16, 0
    v_mov_b32 v17, 0
    v_mov_b32 v18, 0
    v_mov_b32 v19, 0
    s_mov_b64 exec, 7
    ds_write_b128 v27, v[16:19]
    ds_write_b128 v27, v[16:19] offset:{S_LEN}
    s_mov_b64 exec, -1
    """)
    vm.wait("gate")
    gate_verify(a, 203, 20, 21)
    a("s_waitcnt lgkmcnt(0)")
    stamp(a)
    a("s_barrier")
    vm.wait("gx")
    for t in range(4): a(f"v_mov_b32 v{224+t}, 0")
    for jj in range(4):
        for t in range(4):
            a(f"v_dot2_f32_bf16 v{224+t}, v{208+4*t+jj}, v{204+jj}, v{224+t}")
    for mod in ("row_shr:1", "row_shr:2", "row_shr:4", "row_shr:8"):
        for t in range(4):
            a(f"v_add_f32_dpp v{224+t}, v{224+t}, v{224+t} {mod} row_mask:0xf bank_mask:0xf bound_ctrl:0")
    for mod in ("row_bcast:15 row_mask:0xa", "row_bcast:31 row_mask:0xc"):
        for t in range(4):
            a(f"v_add_f32_dpp v{224+t}, v{224+t}, v{224+t} {mod} bank_mask:0xf")
    for t in range(4): a(f"v_mul_f32 v{224+t}, {f32(-LOG2E)}, v{224+t}")
    for t in range(4): a(f"v_exp_f32 v{224+t}, v{224+t}")
    for t in range(4): a(f"v_add_f32 v{224+t}, 1.0, v{224+t}")
    for t in range(4): a(f"v_rcp_f32 v{224+t}, v{224+t}")
    for t in range(4): a(f"v_or_b32 v{224+t}, 1, v{224+t}")
    a(f"""
    s_lshr_b32 s9, s47, 2
    s_mul_i32 s9, s9, {ZS}
    s_lshr_b32 s10, s48, 8
    s_and_b32 s10, s10, 0xf0
    s_add_u32 s9, s9, s10
    s_add_u32 s9, s9, {WS_Z + 2560}
    v_mov_b32 v20, s9
    s_mov_b32 exec_lo, 0
    s_mov_b32 exec_hi, 0x80000000
    global_store_dwordx4 v20, v[224:227], s[34:35] sc1
    s_mov_b64 exec, -1
    """)
    a("v_add_u32 v238, 0x10000, v238")
    stamp(a)
    if SUBR:
        a("s_call_b64 s[100:101], L_setup")
        a("s_nop 0")
    a("s_barrier")
    for n in range(10, 16): wo_item(a, vm, n)
    a("s_branch L_p2w")

AUX = 131072
KVI = 16384
def gen_phase2(a):
    a("L_setup:" if SUBR else "L_p2w:\nL_p2:")
    a(f"""
    v_lshlrev_b32 v3, 4, v1
    s_and_b32 s47, s44, 3                    ; cb
    s_lshr_b32 s48, s44, 2                   ; kh
    v_lshrrev_b32 v12, 5, v1                 ; g
    v_and_b32 v11, 31, v1
    s_mul_i32 s9, s44, {4*ZS}
    s_add_u32 s9, s9, {WS_Z}
    v_add_u32 v4, s9, v3
    v_add_u32 v2, {2*ZS}, v4
    v_bfe_u32 v13, v1, 2, 2
    v_mul_u32_u24 v7, {ZS}, v13
    v_and_b32 v14, 3, v1
    v_lshl_add_u32 v7, v14, 4, v7
    v_add_u32 v7, s9, v7
    v_mul_u32_u24 v8, 576, v13
    v_lshl_add_u32 v8, v14, 3, v8
    s_lshl_b32 s50, s44, 12
    s_add_u32 s50, s50, {AUX}
    v_add_u32 v8, s50, v8
    v_lshlrev_b32 v17, 3, v1
    v_add_u32 v17, s50, v17
    v_min_u32 v13, 16, v11
    v_lshlrev_b32 v13, 5, v13
    v_lshl_add_u32 v13, v12, 4, v13
    v_add_u32 v18, s50, v13
    v_max_u32 v13, 15, v11
    v_subrev_u32 v13, 15, v13
    v_lshlrev_b32 v13, 5, v13
    v_lshl_add_u32 v13, v12, 4, v13
    v_add_u32 v19, s50, v13
    v_lshrrev_b32 v13, 4, v1
    v_mul_u32_u24 v13, {ZS}, v13
    v_bfe_u32 v14, v1, 2, 2
    v_lshl_add_u32 v13, v14, 7, v13
    v_and_b32 v14, 3, v1
    v_lshl_add_u32 v13, v14, 2, v13
    v_add_u32 v13, s9, v13
    v_add_u32 v9, 3328, v13
    s_lshr_b32 s9, s62, 1
    s_mul_i32 s9, s9, {ZS}
    s_lshl_b32 s10, s44, 7
    s_add_u32 s9, s9, s10
    s_add_u32 s9, s9, {WS_Z + 1536}
    v_and_b32 v14, 1, v1
    v_lshlrev_b32 v14, 2, v14
    v_add_u32 v10, s9, v14
    s_lshl_b32 s9, s63, 3
    s_lshl_b32 s10, s47, 1
    s_add_u32 s9, s9, s10
    s_add_u32 s9, s9, s48
    s_mul_i32 s9, s9, {ZS}
    s_add_u32 s9, s9, {WS_Z + 2816}
    v_bfe_u32 v13, v1, 2, 2
    v_lshlrev_b32 v13, 7, v13
    v_and_b32 v14, 3, v1
    v_lshl_add_u32 v13, v14, 2, v13
    v_add_u32 v105, s9, v13
    s_lshl_b32 s9, s62, 5
    s_lshl_b32 s10, s44, 2
    s_add_u32 s9, s9, s10
    s_lshl_b32 s9, s9, 10
    s_add_u32 s9, s9, {WS_PQ}
    v_add_u32 v5, s9, v3
    s_lshl_b32 s9, s63, 7
    s_lshl_b32 s10, s47, 5
    s_add_u32 s9, s9, s10
    s_lshl_b32 s10, s48, 4
    s_add_u32 s9, s9, s10
    s_lshl_b32 s9, s9, 12
    s_lshl_b32 s10, s62, 6
    s_add_u32 s9, s9, s10
    s_add_u32 s49, s9, {WS_BG}
    v_lshlrev_b32 v13, 14, v12
    v_lshl_add_u32 v6, v11, 1, v13           ; b voffset
    s_lshr_b32 s9, s62, 1
    s_mul_i32 s9, s9, {ZS}
    s_and_b32 s10, s62, 1
    s_lshl_b32 s10, s10, 7
    s_add_u32 s9, s9, s10
    s_add_u32 s9, s9, {WS_Z + 2560}
    v_lshlrev_b32 v13, 2, v11
    v_add_u32 v15, s9, v13                   ; g
    s_lshl_b32 s9, s62, 15
    s_lshl_b32 s10, s63, 8
    s_add_u32 s9, s9, s10
    s_lshl_b32 s10, s47, 6
    s_add_u32 s9, s9, s10
    s_lshl_b32 s10, s48, 5
    s_add_u32 s9, s9, s10
    v_lshlrev_b32 v13, 10, v11
    v_lshl_add_u32 v13, v12, 4, v13
    v_add_u32 v16, s9, v13                   ; out
    s_lshl_b32 s9, s44, 12
    s_add_u32 s9, s9, {AUX}
    v_add_u32 v13, s9, v3
    s_lshl_b32 s9, s48, 14
    s_add_u32 s9, s9, {AUX}
    v_add_u32 v14, s9, v3
    s_mov_b32 s54, {f32(1e-6)}
    """)
    srd(a, 36, 34, 6 << 20)
    if SUBR:
        a("""
        s_setpc_b64 s[100:101]
        L_p2w:
        s_waitcnt vmcnt(0)
        L_p2:
        """)
    else: a("s_waitcnt vmcnt(0)")
    stamp(a, 13)
    def bloads():
        for k in range(8):
            a(f"s_add_u32 s9, s49, {(8*(k>>2) + (k&3))*4096}")
            a(f"buffer_load_ushort v{96+k}, v6, s[36:39], s9 offen sc1")
    lp, lq, l1, l2 = label("pp"), label("pq"), label("p1"), label("p2")
    KVGATE = f"s_bitcmp1_b32 s55, 0\n    s_cbranch_scc1 {l2}b" if KVAFTER else ""
    if POLLAFTER: a("s_barrier")
    a("""
    global_load_dword v21, v9, s[34:35] sc1
    global_load_dword v20, v10, s[34:35] sc1
    """)
    if not POLLAFTER: a("s_barrier")
    wo_frag_reads(a, 238)
    stamp(a)
    a(f"""
    s_mov_b32 s10, 0
    s_mov_b32 s55, 3
    {lp}:
    s_waitcnt vmcnt(0)
    s_add_u32 s10, s10, 1
    s_cmp_gt_u32 s10, {SPIN_MAX}
    s_cselect_b64 s[58:59], 0, -1
    s_bitcmp0_b32 s55, 1
    s_cbranch_scc1 {l1}
    v_cmp_ne_u32 vcc, 1, v21
    s_and_b64 vcc, vcc, s[58:59]
    s_cbranch_scc1 {l1}
    s_and_b32 s55, s55, 1
    s_mov_b32 s57, s55
    global_load_dwordx4 v[32:35], v4, s[34:35] sc1
    global_load_dwordx4 v[36:39], v4, s[34:35] offset:{ZS} sc1
    global_load_dwordx4 v[40:43], v2, s[34:35] sc1
    global_load_dwordx4 v[44:47], v2, s[34:35] offset:{ZS} sc1
    global_load_dwordx4 v[48:51], v7, s[34:35] offset:1024 sc1
    {l1}:
    s_bitcmp0_b32 s55, 0
    s_cbranch_scc1 {l2}
    v_cmp_ne_u32 vcc, 1, v20
    s_and_b64 vcc, vcc, s[58:59]
    s_cbranch_scc1 {l2}
    s_and_b32 s55, s55, 2
    """)
    for j in range(4):
        a(f"global_load_dwordx4 {vr(80+4*j,4)}, v5, s[34:35] offset:{1024*j} sc1")
    a(f"""
    {l2}:
    s_cmp_eq_u32 s55, 0
    s_cbranch_scc1 {lq}
    s_sleep {PSLEEP}
    s_bitcmp0_b32 s55, 1
    s_cbranch_scc1 {l2}b
    {KVGATE}
    v_cmp_ne_u32 vcc, 1, v21
    s_mov_b64 exec, vcc
    global_load_dword v21, v9, s[34:35] sc1
    s_mov_b64 exec, -1
    {l2}b:
    s_bitcmp0_b32 s55, 0
    s_cbranch_scc1 {lp}
    global_load_dword v20, v10, s[34:35] sc1
    s_branch {lp}
    {lq}:
    global_load_dword v106, v105, s[34:35] sc1
    global_load_dword v104, v15, s[34:35] sc1
    """)
    stamp(a)
    if FINEW:
        lw = label("fw")
        a(f"""
        s_waitcnt vmcnt(6)
        s_cmp_eq_u32 s57, 1
        s_cbranch_scc1 {lw}
        s_waitcnt vmcnt(2)
        {lw}:
        """)
    else: a("s_waitcnt vmcnt(2)")
    for i in range(5):
        a(f"v_cvt_pk_bf16_f32 v{52+2*i}, v{32+4*i}, v{33+4*i}")
        a(f"v_cvt_pk_bf16_f32 v{53+2*i}, v{34+4*i}, v{35+4*i}")
        if i < 4: a(f"ds_write_b64 v17, {vr(52+2*i,2)} offset:{576*i}")
        else: a(f"ds_write_b64 v8, {vr(52+2*i,2)} offset:512")
    a("s_waitcnt lgkmcnt(0)")
    for j in range(4):
        a(f"ds_read_b128 {vr(64+4*j,4)}, v{18 + (j & 1)} offset:{576*j}")
    stamp(a)
    if STAMP: a("s_mov_b32 s90, s10")
    for j in range(4):
        a(f"s_waitcnt vmcnt({5-j}) lgkmcnt({3-j})" if FINEW else f"s_waitcnt lgkmcnt({3-j})")
        a(f"v_mfma_f32_32x32x16_bf16 {vr(192+16*j,16)}, {vr(64+4*j,4)}, {vr(80+4*j,4)}, 0")
    def bcheck():
        lb0, lb1 = label("b"), label("b")
        a(f"""
        s_mov_b32 s10, 0
        s_waitcnt vmcnt(0)
        {lb0}:
        v_min_u32 v20, v104, v106
        v_cmp_eq_u32 vcc, 0, v20
        s_add_u32 s10, s10, 1
        s_cmp_gt_u32 s10, {SPIN_MAX}
        s_cbranch_scc1 {lb1}
        s_cbranch_vccz {lb1}
        s_sleep {PSLEEP}
        global_load_dword v106, v105, s[34:35] sc1
        global_load_dword v104, v15, s[34:35] sc1
        s_waitcnt vmcnt(0)
        s_branch {lb0}
        {lb1}:
        """)
        bloads()
    if BEARLY: bcheck()
    for j in range(4):
        D = 192 + 16 * j
        N, Dn = (D, D + 8) if j % 2 == 0 else (D + 8, D)
        a(f"v_add_f32 v{Dn}, s54, v{Dn}")
        a(f"v_rcp_f32 v{Dn}, v{Dn}")
        for r in range(8): a(f"v_mul_f32 v{N+r}, v{Dn}, v{N+r}")
        for k in range(4): a(f"v_cvt_pk_bf16_f32 v{Dn+4+k}, v{N+2*k}, v{N+2*k+1}")
        a(f"ds_write_b128 v13, {vr(Dn+4,4)} offset:{1024*j}")
    a("""
    s_waitcnt lgkmcnt(0)
    s_barrier
    """)
    stamp(a)
    def s2reads(j):
        a(f"ds_read_b128 {vr(192+4*j,4)}, v14 offset:{1024*j}")
    for j in range(8): s2reads(j)
    if not BEARLY and BAT < 0: bcheck()
    for j in range(16):
        a(f"s_waitcnt lgkmcnt({min(7, 15-j)})")
        c = "0" if j == 0 else vr(32, 16)
        a(f"v_mfma_f32_32x32x16_bf16 {vr(32,16)}, {vr(128+4*j,4)}, {vr(192+4*j,4)}, {c}")
        if j + 8 < 16: s2reads(j + 8)
        if j == BAT: bcheck()
    stamp(a)
    le0, le1 = label("e"), label("e")
    a(f"""
    s_lshl_b32 s9, s44, 11
    v_add_u32 v13, s9, v3
    s_xor_b32 s9, s9, {4 << 11}
    v_add_u32 v14, s9, v3
    s_waitcnt vmcnt(0)
    """)
    for k in range(8):
        a(f"v_lshlrev_b32 v{72+k}, 16, v{96+k}")
    a(f"""
    s_cmp_eq_u32 s48, 0
    s_cbranch_scc1 {le0}
    ds_write_b128 v13, v[32:35]
    ds_write_b128 v13, v[36:39] offset:1024
    """)
    for r in range(8): a(f"v_mov_b32 v{32+r}, v{40+r}")
    a(f"""
    s_branch {le1}
    {le0}:
    ds_write_b128 v13, v[40:43]
    ds_write_b128 v13, v[44:47] offset:1024
    {le1}:
    """)
    for r in range(8): a(f"v_sub_f32 v{32+r}, v{32+r}, v{72+r}")
    a("""
    s_waitcnt lgkmcnt(0)
    s_barrier
    ds_read_b128 v[64:67], v14
    ds_read_b128 v[68:71], v14 offset:1024
    s_waitcnt lgkmcnt(0)
    """)
    for r in range(8): a(f"v_add_f32 v{32+r}, v{32+r}, v{64+r}")
    for r in range(8): a(f"v_fmac_f32 v{72+r}, v104, v{32+r}")
    for k in range(4): a(f"v_cvt_pk_bf16_f32 v{80+k}, v{72+2*k}, v{73+2*k}")
    a("""
    v_permlane32_swap_b32 v80, v82
    v_permlane32_swap_b32 v81, v83
    global_store_dwordx4 v16, v[80:83], s[30:31]
    """)
    stamp(a)
    stamp_end(a)

GSTEP = (1, 4)
PSLEEP = 4
NLA = 8
CNT1 = False
DYNP = True
BFLAG1 = True
WO_A1 = (0, 1)
WO_THR = None
PADN = 64
RBIT = 7
BEARLY = False
SUBR = True
ROTM = 2
TLBW = True
PREW = True
ILV = False
FINEW = True
BAT = 6
WOE = {15: [0]}
KVAFTER = False
POLLAFTER = True
WO_A2 = (2, 3, 4, 5, 6)
PRIO_A = 0
PRIO_B = 1
PRIO_C = 2
WARM = 1
KVPOLL = 0xffff
QS = 1
MF_FIRST = False
RPM = 2
P2F = (24, 36, 64, 76)
P2D = 3
LA = 3
XLA = 4
XFIRST = False
BWPOS = 3
PRIO_B1 = 1
THIN = {1: [0], 2: [1], 3: [2], 4: [3], 5: [4], 6: [5], 7: [6], 8: [7]}
Q7BLK = 1
XB = 2
WO_EARLY = (0, 4, 5, 6, 7)
WO_LATE = (1, 4, 5, 6, 7, 8, 9, 10, 11, 12, 13, 14, 15)
APK = False
WO_N1 = 8
SBAR = 11
SBAR2 = 12
ESPLIT = 0.7
CTAIL = 6

def kd(name, nv, ns):
    return f"""
.p2align 6
.amdhsa_kernel {name}
  .amdhsa_next_free_vgpr {nv}
  .amdhsa_next_free_sgpr {ns}
  .amdhsa_accum_offset {(nv + 3) // 4 * 4}
  .amdhsa_group_segment_fixed_size 0
  .amdhsa_kernarg_size 112
  .amdhsa_user_sgpr_count 2
  .amdhsa_user_sgpr_kernarg_segment_ptr 1
  .amdhsa_system_sgpr_workgroup_id_x 1
  .amdhsa_float_denorm_mode_32 3
.end_amdhsa_kernel
"""

def main(path):
    hdr = open("cdna_kernels/" + NAME + ".s.ref").read().split("; Override launch")[0]
    a = Asm()
    gen_k1(a)
    body = a.finalize()
    if WARM == 2:
        lines = body.split("\n")
        out_l, cnt, npad = [], 0, 0
        started = False
        for ln in lines:
            if ln.strip() == "L_gemm:": started = True
            st = ln.strip()
            is_ins = ln.startswith("    ") and st and not st.startswith((";", "."))
            if started and is_ins:
                cnt += 1
                if cnt >= PADN and npad < 64:
                    out_l.append(f"LPAD_{npad}:")
                    out_l.append("    s_cbranch_execz L_wret")
                    npad += 1; cnt = 0
            out_l.append(ln)
        disp = ["L_wdisp:"]
        for i in range(npad):
            disp.append(f"    s_cmp_eq_u32 s9, {i}")
            disp.append(f"    s_cbranch_scc1 LPAD_{i}")
        disp.append("    s_branch L_wret")
        body = "\n".join(out_l).replace("@WDISP@", "\n".join(disp))
        print("pads:", npad)
    out = hdr
    out += f"; @launch grid=(256,1,1) block=(512,1,1) lds={LDS}\n"
    out += """;
"""
    out += '.amdgcn_target "amdgcn-amd-amdhsa--gfx950"\n.text\n'
    out += body
    out += '.section .rodata,"a"\n' + kd(K1, 256, 102)
    open(path, "w").write(out)
    print("auto nop states:", a.auto_nop_states)

if __name__ == "__main__":
    args = []
    for x in sys.argv[1:]:
        if x == "--stamp": STAMP = True
        elif x == "--rt": STAMP = True; STI = "s_memrealtime"
        elif x.startswith("--") and "=" in x:
            k, v = x[2:].split("=")
            globals()[k] = eval(v)
        else: args.append(x)
    main(args[0] if args else "cdna_kernels/" + NAME + ".s")
```
